```python
import torch

def _softmax(x, axis=-1):
    return torch.softmax(x, dim=axis)
def _gelu(x):
    return torch.nn.functional.gelu(x, approximate="tanh")
def _silu(x):
    return torch.nn.functional.silu(x)
def _sigmoid(x):
    return torch.sigmoid(x)
def _layernorm(x, axis=-1, eps=1e-5):
    m = x.mean(dim=axis, keepdim=True)
    v = x.var(dim=axis, keepdim=True, unbiased=False)
    return (x - m) / torch.sqrt(v + eps)
def _scatter_add(tgt, idx, src, axis=0):
    return tgt.clone().index_add_(axis, idx, src)
def _segment_sum(src, seg, n):
    out = torch.zeros((n,) + src.shape[1:], dtype=src.dtype)
    return out.index_add_(0, seg, src)
def _pad(x, pw):
    flat = tuple(v for pair in reversed(pw) for v in pair)
    return torch.nn.functional.pad(x, flat)

kernel_name = 'sequential_preLN__softmax_full_mha__glu_gated_bilinear__prompt'

def setup_inputs():

    _w = (lambda a: (lambda t: t.to(torch.bfloat16) if t.is_floating_point() else t)(torch.as_tensor(a)))
    def _A_setup():
        B, S, D = 1, 2048, 1024
        return {
            "x": _w((lambda *s: torch.randn(*s, dtype=torch.bfloat16) * 0.05)(B, S, D)),
            "wqkv": _w((lambda *s: torch.randn(*s, dtype=torch.bfloat16) * 0.05)(D, 3 * D)),
            "wo": _w((lambda *s: torch.randn(*s, dtype=torch.bfloat16) * 0.05)(D, D)),
        }
    _A_in = _A_setup()

    def _B_setup():
        B, S, D, F = 1, 2048, 1024, 3584
        return {
            "x": _w((lambda *s: torch.randn(*s, dtype=torch.bfloat16) * 0.05)(B, S, D)),
            "w_gate": _w((lambda *s: torch.randn(*s, dtype=torch.bfloat16) * 0.8)(D, F) * (D ** -0.5)),
            "w_up": _w((lambda *s: torch.randn(*s, dtype=torch.bfloat16) * 0.8)(D, F) * (D ** -0.5)),
            "w_down": _w((lambda *s: torch.randn(*s, dtype=torch.bfloat16) * 0.8)(F, D) * (F ** -0.5)),
        }
    _B_in = _B_setup()

    return {
        "A_x": _A_in["x"],
        "A_wqkv": _A_in["wqkv"],
        "A_wo": _A_in["wo"],
        "B_x": _B_in["x"],
        "B_w_gate": _B_in["w_gate"],
        "B_w_up": _B_in["w_up"],
        "B_w_down": _B_in["w_down"],
    }

def reference(A_x, A_wqkv, A_wo, B_x, B_w_gate, B_w_up, B_w_down):
    def _A_ref(x, wqkv, wo):
        B, S, D = x.shape
        H = 32; Dh = D // H
        qkv = (lambda x, *d: x.permute(*d))((x @ wqkv).reshape(B, S, 3, H, Dh), 2, 0, 3, 1, 4)
        q, k, v = qkv[0], qkv[1], qkv[2]
        scale = Dh ** -0.5
        scores = torch.einsum("bhqd,bhkd->bhqk", q, k) * scale
        p = _softmax(scores, axis=-1)
        o = torch.einsum("bhqk,bhkd->bhqd", p, v)
        return (lambda x, *d: x.permute(*d))(o, 0, 2, 1, 3).reshape(B, S, D) @ wo

    def _B_ref(x, w_gate, w_up, w_down):
        g = torch.einsum("bsd,df->bsf", x, w_gate)
        u = torch.einsum("bsd,df->bsf", x, w_up)
        h = g * u
        return torch.einsum("bsf,fd->bsd", h, w_down)

    x = A_x
    h = x + _A_ref(_layernorm(x, axis=-1), A_wqkv, A_wo)
    h2 = h + _B_ref(_layernorm(h, axis=-1), B_w_gate, B_w_up, B_w_down)
    return h2
```

```python
import re


def vr(b, n=1):
    return f"v{b}" if n == 1 else f"v[{b}:{b + n - 1}]"


def ar(b, n=1):
    return f"a{b}" if n == 1 else f"a[{b}:{b + n - 1}]"


def sr(b, n=1):
    return f"s{b}" if n == 1 else f"s[{b}:{b + n - 1}]"


_REG = re.compile(r"^-?\|?([vas])(?:(\d+)|\[(\d+):(\d+)\])\|?$")


def regs_of(tok):
    tok = tok.strip()
    m = re.match(r"^(?:abs|neg)\((.*)\)$", tok)
    if m:
        tok = m.group(1)
    if tok == "vcc":
        return {("s", 106), ("s", 107)}
    if tok == "exec":
        return {("s", 126), ("s", 127)}
    if tok == "m0":
        return {("s", 124)}
    m = _REG.match(tok)
    if not m:
        return set()
    f = m.group(1)
    if m.group(2) is not None:
        return {(f, int(m.group(2)))}
    return {(f, i) for i in range(int(m.group(3)), int(m.group(4)) + 1)}


TRANS = ("v_exp_f32", "v_log_f32", "v_rcp_f32", "v_rsq_f32", "v_sqrt_f32", "v_sin_f32", "v_cos_f32")


class I:
    def __init__(self, text):
        self.text = text
        t = text.split(";")[0].strip()
        self.label = t.endswith(":")
        self.directive = t.startswith(".")
        self.empty = not t
        self.op = ""
        self.w = set()
        self.r = set()
        self.srcc = set()
        self.ab = set()
        self.cls = "none"
        self.passes = 0
        self.stdata = set()
        if self.label or self.directive or self.empty:
            return
        parts = t.split(None, 1)
        self.op = op = parts[0]
        rest = parts[1] if len(parts) > 1 else ""
        ops, depth, cur = [], 0, ""
        for ch in rest:
            if ch in "[(":
                depth += 1
            if ch in "])":
                depth -= 1
            if ch == "," and depth == 0:
                ops.append(cur.strip())
                cur = ""
            else:
                cur += ch
        if cur.strip():
            ops.append(cur.strip())
        mods = ""
        if ops:
            last = ops[-1].split()
            ops[-1] = last[0]
            mods = " ".join(last[1:])
        self.mods = mods
        R = [regs_of(o) for o in ops]
        un = lambda l: set().union(*l) if l else set()
        if op.startswith("v_mfma") or op.startswith("v_smfmac"):
            self.cls = "mfma"
            self.passes = 8 if "32x32" in op else 4
            self.w = R[0]
            self.ab = R[1] | R[2]
            if op.startswith("v_smfmac"):
                self.srcc = R[0]
                self.ab |= R[3]
            else:
                self.srcc = R[3]
            self.r = self.ab | self.srcc
        elif op.startswith("v_"):
            self.cls = "valu"
            if op.startswith("v_cmp"):
                self.w = R[0]
                self.r = un(R[1:])
                if op.startswith("v_cmpx"):
                    self.w |= regs_of("exec")
            elif op.startswith("v_permlane") and "swap" in op:
                self.w = R[0] | R[1]
                self.r = R[0] | R[1]
            elif "_co_" in op:
                self.w = R[0] | R[1]
                self.r = un(R[2:])
            else:
                self.w = R[0]
                self.r = un(R[1:])
                if op.startswith(("v_fmac", "v_dot2c", "v_writelane")) or "dpp" in op or "row_" in mods or "quad_perm" in mods:
                    self.r |= R[0]
            self.dpp = "dpp" in op or "row_" in mods or "quad_perm" in mods
        elif op.startswith("ds_"):
            self.cls = "ds"
            if op.startswith(("ds_read", "ds_bpermute", "ds_permute", "ds_swizzle")):
                self.w = R[0]
                self.r = un(R[1:])
            else:
                self.r = un(R)
        elif op.startswith(("buffer_", "global_")):
            self.cls = "vmem"
            self.lds = bool(re.search(r"\blds\b", mods)) or "load_lds" in op
            if "load" in op and not self.lds:
                self.w = R[0]
                self.r = un(R[1:])
            elif "atomic" in op and "sc0" in mods and op.startswith("global"):
                self.w = R[0]
                self.r = un(R[1:])
            else:
                self.r = un(R)
                if "store" in op and ("x4" in op or "x3" in op):
                    self.stdata = R[0] if op.startswith("buffer") else R[1]
            if self.lds:
                self.r |= regs_of("m0")
        elif op.startswith("s_"):
            self.cls = "salu"
            if op in ("s_nop", "s_waitcnt", "s_barrier", "s_endpgm", "s_setprio", "s_sleep") or "branch" in op:
                pass
            elif op.startswith("s_cmp"):
                self.r = un(R)
            else:
                self.w = R[0]
                self.r = un(R[1:])
                if "saveexec" in op:
                    self.w |= regs_of("exec")

    def states(self):
        if self.cls == "none":
            return 0
        if self.op == "s_nop":
            return int(self.text.split(";")[0].split()[1], 0) + 1
        return 1


def need_states(p, c):
    n = 0
    vw = {x for x in p.w if x[0] in "va"}
    sw = {x for x in p.w if x[0] == "s"}
    if p.cls == "valu":
        if c.cls == "mfma" and vw & c.r:
            n = max(n, 2)
        if c.cls == "mfma" and regs_of("exec") & sw:
            n = max(n, 4)
        if c.cls == "valu":
            if c.op.startswith("v_permlane") and vw & c.r:
                n = max(n, 2)
            if getattr(c, "dpp", False) and vw & c.r:
                n = max(n, 2)
            if getattr(c, "dpp", False) and regs_of("exec") & sw:
                n = max(n, 5)
            if c.op.startswith(("v_readlane", "v_readfirstlane")) and vw & c.r:
                n = max(n, 1)
            if p.op.startswith(TRANS) and vw & c.r and not c.op.startswith(TRANS):
                n = max(n, 1)
            if sw & c.r:
                n = max(n, 4 if c.op.startswith(("v_readlane", "v_writelane")) else 2)
            if c.op.startswith("v_cndmask") and (sw & regs_of("vcc")) and len(c.text.split(",")) < 5:
                n = max(n, 2)
            if "sdwa" in p.op and vw & c.r:
                n = max(n, 1)
        if c.cls == "vmem" and sw & c.r:
            n = max(n, 5)
        if c.cls == "salu" and sw & c.r:
            n = max(n, 2)
    if p.cls == "salu":
        if ("s", 124) in p.w and c.cls == "vmem" and getattr(c, "lds", False):
            n = max(n, 1)
    if p.cls == "vmem" and p.stdata:
        if c.cls == "valu" and p.stdata & c.w:
            n = max(n, 2)
        elif p.stdata & c.w:
            n = max(n, 1)
    if p.cls == "mfma":
        full = {4: 8, 8: 12}[p.passes]
        if c.cls == "mfma":
            if p.w & c.ab:
                n = max(n, full)
            if p.w & c.srcc and not (p.w == c.srcc and p.passes == c.passes):
                n = max(n, full - 2)
            if p.w & c.w and not (p.w & c.srcc):
                n = max(n, full - 2)
        elif c.cls in ("valu", "ds", "vmem"):
            if p.w & (c.r | c.w):
                n = max(n, full)
            if c.cls == "valu" and p.srcc & c.w:
                n = max(n, {4: 3, 8: 7}[p.passes])
    return n


def hazard_pass(lines, loops=True):
    ins = [I(l) for l in lines]
    out = []
    for c in ins:
        if c.cls != "none":
            dist = 0
            need = 0
            for p in reversed(out):
                if p.cls == "none":
                    continue
                if p.op in ("s_branch", "s_endpgm", "s_setpc_b64"):
                    break
                k = need_states(p, c) - dist
                need = max(need, k)
                dist += p.states()
                if dist >= 20:
                    break
            while need > 0:
                k = min(need, 16)
                out.append(I(f"s_nop {k - 1}"))
                need -= k
        out.append(c)
    labels = {x.text.split(";")[0].strip()[:-1]: i for i, x in enumerate(out) if x.label}
    for i, b in enumerate(out):
        if b.cls == "salu" and "branch" in b.op:
            tgt = b.text.split(";")[0].split()[1]
            if tgt not in labels:
                continue
            before = [x for x in out[max(0, i - 40): i + 1] if x.cls != "none"]
            after = [x for x in out[labels[tgt]: labels[tgt] + 40] if x.cls != "none"]
            d_after = 0
            for c in after:
                dist = d_after
                for p in reversed(before):
                    if need_states(p, c) > dist:
                        raise RuntimeError(f"branch hazard {p.text!r} -> {c.text!r} via {b.text!r} dist {dist}")
                    dist += p.states()
                    if dist >= 20:
                        break
                d_after += c.states()
                if c.op in ("s_branch", "s_endpgm") or d_after >= 20:
                    break
    return [x.text for x in out]


class Prog:
    def __init__(self):
        self.l = []

    def __call__(self, *lines):
        for x in lines:
            for y in x.split("\n"):
                y = y.strip()
                if y:
                    self.l.append(y)

    def ext(self, lines):
        for x in lines:
            self(x)

    def text(self):
        out = []
        for x in hazard_pass(self.l):
            out.append(x if x.split(";")[0].strip().endswith(":") or x.startswith(".") else "  " + x)
        return "\n".join(out) + "\n"


class Op:
    def __init__(self, text, kind="x", tag=None, need_vm=None, need_ds=None):
        self.text, self.kind, self.tag, self.need_vm, self.need_ds = text, kind, tag, need_vm, need_ds


def resolve_waits(seq_fn, n_sim=4, pre=None):
    hist_vm, hist_ds = [], []
    if pre:
        for o in pre:
            if o.kind == "vm":
                hist_vm.append(o.tag)
            if o.kind == "ds":
                hist_ds.append(o.tag)
    res = None
    for it in range(n_sim):
        cur = []
        for o in seq_fn(it):
            if o.kind == "vm":
                hist_vm.append(o.tag)
            elif o.kind == "ds":
                hist_ds.append(o.tag)
            if o.kind == "need":
                nv = nd = None
                if o.need_vm is not None:
                    idx = [i for i, t in enumerate(hist_vm) if t in o.need_vm]
                    assert len(idx) == len(o.need_vm), ("missing vm", it, o.need_vm)
                    nv = min(63, len(hist_vm) - 1 - max(idx))
                if o.need_ds is not None:
                    idx = [i for i, t in enumerate(hist_ds) if t in o.need_ds]
                    assert len(idx) == len(o.need_ds), ("missing ds", it, o.need_ds)
                    nd = min(15, len(hist_ds) - 1 - max(idx))
                cur.append((nv, nd))
            else:
                cur.append(o.text)
        if res is None:
            res = cur
        else:
            assert len(res) == len(cur)
            for i, (a, b) in enumerate(zip(res, cur)):
                if isinstance(a, tuple):
                    res[i] = tuple(None if x is None else min(x, y) for x, y in zip(a, b))
                else:
                    assert a == b, (a, b)
    out = []
    for x in res:
        if isinstance(x, tuple):
            s = " ".join(f"{n}({v})" for n, v in (("vmcnt", x[0]), ("lgkmcnt", x[1])) if v is not None)
            out.append("s_waitcnt " + s)
        else:
            out.append(x)
    return out


def kernel_header(name):
    return f""".text
.globl {name}
.p2align 8
.type {name},@function
"""


def kernel_desc(name, nvgpr, nagpr, nsgpr=96):
    acc = (nvgpr + 3) // 4 * 4
    return f""".section .rodata,"a"
.p2align 6
.amdhsa_kernel {name}
  .amdhsa_next_free_vgpr {acc + nagpr if nagpr else nvgpr}
  .amdhsa_next_free_sgpr {nsgpr}
  .amdhsa_accum_offset {acc}
  .amdhsa_group_segment_fixed_size 0
  .amdhsa_kernarg_size 80
  .amdhsa_user_sgpr_count 2
  .amdhsa_user_sgpr_kernarg_segment_ptr 1
  .amdhsa_system_sgpr_workgroup_id_x 1
  .amdhsa_float_denorm_mode_32 3
.end_amdhsa_kernel
"""
```

```python
from asmlib import *
from gemm import S_WAVE

MB = 1 << 20
WS_Q, WS_K, WS_V, WS_O = 4 * MB, 8 * MB, 12 * MB, 16 * MB
ARG_WS = 72


def k2(CFG, entry, finish, stamp, srd):
    name = "attn_kernel"
    p = Prog()
    TPC = CFG.get("k2_TPC", 4)
    S = CFG.get("k2_S", 6)
    CH = TPC * 4096
    NCH = 64 // TPC
    ND = CH // 8192
    FLAG = S * CH
    SA, SB, P, O, L, NEG, Q, KF, VF, SEL = 16, 32, 48, 56, 72, 80, 96, 104, 112, 120
    vL16, R0, R1 = 2, 3, 4
    sW, sM, sMEND, sR, sCNT, sMODE, sHEAD, sQB = 24, 26, 29, 27, 28, 33, 21, 22
    entry(p, name, 256, [(44, ARG_WS)])
    p("s_and_b32 s30, s2, 7", "s_lshr_b32 s31, s2, 3", "s_lshl_b32 s30, s30, 2", "s_and_b32 s32, s31, 3",
      f"s_add_u32 {sr(sHEAD)}, s30, s32", f"s_lshr_b32 {sr(sQB)}, s31, 2",
      f"v_lshlrev_b32 v{vL16}, 4, v1", f"s_mov_b32 {sr(sMODE)}, 0")
    p("v_lshrrev_b32 v5, 4, v1", "v_lshrrev_b32 v6, 2, v1", "v_xor_b32 v5, v5, v6", "v_and_b32 v5, 1, v5",
      "v_subrev_u32 v5, 1, v5", "v_and_b32 v5, 0x3f803f80, v5")
    for i in range(4):
        p(f"v_mov_b32 v{SEL + i}, v5")
    p("s_waitcnt lgkmcnt(0)")
    srd(p, 4, 44, WS_K, 8 * MB)
    srd(p, 8, 44, WS_Q, 4 * MB)
    srd(p, 12, 44, WS_O, 4 * MB)
    p(f"s_lshl_b32 s34, {sr(sHEAD)}, 17", f"s_lshl_b32 s30, {sr(sQB)}, 14", f"s_lshl_b32 s31, {sr(S_WAVE)}, 11",
      "s_add_u32 s30, s30, s31", "s_add_u32 s30, s30, s34")
    p(f"buffer_load_dwordx4 {vr(Q, 4)}, v{vL16}, s[8:11], s30 offen",
      f"buffer_load_dwordx4 {vr(Q + 4, 4)}, v{vL16}, s[8:11], s30 offen offset:1024")
    p(f"L_{name}_start:")
    p(f"s_lshr_b32 s30, {sr(S_WAVE)}, 2", "s_lshl_b32 s30, s30, 22", f"s_and_b32 s31, {sr(S_WAVE)}, 3",
      f"s_mul_i32 s31, s31, {ND * 1024}", f"s_add_u32 {sr(sW)}, s34, s30", f"s_add_u32 {sr(sW)}, {sr(sW)}, s31",
      f"s_add_u32 s35, {sr(sW)}, {NCH * CH // 2}",
      f"s_mul_i32 {sr(sM)}, {sr(S_WAVE)}, {ND * 1024}", f"s_add_u32 {sr(sMEND)}, {sr(sM)}, {S * CH}",
      f"s_mov_b32 {sr(sR)}, 0", f"s_mov_b32 s6, {8 * MB}")

    def dma(c):
        ops = [Op(f"s_mov_b32 m0, {sr(sM)}")]
        for j in range(ND):
            o = f" offset:{j * 1024}" if j else ""
            ops.append(Op(f"buffer_load_dwordx4 v{vL16}, s[4:7], {sr(sW)} offen{o} lds", "vm", ("D", c, j)))
        return ops

    def dma_adv():
        return [[Op(f"s_add_u32 {sr(sW)}, {sr(sW)}, {CH // 2}"), Op(f"s_cmp_lt_u32 {sr(sW)}, s35"), Op("s_cselect_b32 s6, s6, 0")],
                [Op(f"s_add_u32 {sr(sM)}, {sr(sM)}, {CH}"), Op(f"s_cmp_ge_u32 {sr(sM)}, {sr(sMEND)}"),
                 Op(f"s_cselect_b32 s30, {S * CH}, 0"), Op(f"s_sub_u32 {sr(sM)}, {sr(sM)}, s30")]]

    pre = []
    for c in range(S - 2):
        pre += dma(c)
        for grp in dma_adv():
            pre += grp
    p.ext(o.text for o in pre)
    for r in list(range(O, O + 16)) + list(range(L, L + 4)):
        p(f"v_mov_b32 v{r}, 0")
    p(f"v_mov_b32 v{R0}, v{vL16}")

    def rdK(t, u):
        c, i = divmod(t, TPC)
        return Op(f"ds_read_b128 {vr(KF + 4 * u, 4)}, v{(R0, R1)[c % 2]} offset:{i * 2048 + u * 1024}", "ds", ("K", t, u))

    def rdV(t, u):
        c, i = divmod(t, TPC)
        return Op(f"ds_read_b128 {vr(VF + 4 * u, 4)}, v{(R0, R1)[c % 2]} offset:{CH // 2 + i * 2048 + u * 1024}", "ds", ("V", t, u))

    def M32(d, a, b, c):
        return Op(f"v_mfma_f32_32x32x16_bf16 {vr(d, 16)}, {vr(a, 4)}, {vr(b, 4)}, {c if isinstance(c, str) else vr(c, 16)}", "mfma")

    def M16(b):
        return Op(f"v_mfma_f32_16x16x32_bf16 {vr(L, 4)}, {vr(SEL, 4)}, {vr(b, 4)}, {vr(L, 4)}", "mfma")

    stamp(p, 1)
    p(f"s_waitcnt vmcnt({(S - 3) * ND})", "s_barrier")
    p(rdK(0, 0).text, rdK(0, 1).text, "s_waitcnt lgkmcnt(0)")
    p(f"s_cmp_lg_u32 {sr(sMODE)}, 0", f"s_cbranch_scc1 L_{name}_havemax")
    p(M32(SA, KF, Q, "0").text, M32(SA, KF + 4, Q + 4, SA).text)
    p(f"v_max3_f32 v5, v{SA}, v{SA + 1}, v{SA + 2}")
    for i in range(3, 15, 2):
        p(f"v_max3_f32 v5, v5, v{SA + i}, v{SA + i + 1}")
    p(f"v_max_f32 v5, v5, v{SA + 15}", "v_mov_b32 v6, v5", "v_permlane32_swap_b32 v5, v6", "v_max_f32 v5, v5, v6")
    for i in range(16):
        p(f"v_sub_f32 v{NEG + i}, 0, v5")
    p(f"L_{name}_havemax:")
    p(M32(SA, KF, Q, NEG).text, M32(SA, KF + 4, Q + 4, SA).text)
    first = [rdK(1, 0), rdK(1, 1), rdV(0, 0), rdV(0, 1)]
    p.ext(o.text for o in first)
    p(f"s_mov_b32 {sr(sCNT)}, {NCH // 2}", "s_nop 7")
    pre += first

    def tile(t):
        c, i = divmod(t, TPC)
        a, b = (SA, SB) if t % 2 == 0 else (SB, SA)
        E = lambda r: Op(f"v_exp_f32 v{a + r}, v{a + r}")
        C = lambda k: Op(f"v_cvt_pk_bf16_f32 v{P + k}, v{a + 2 * k}, v{a + 2 * k + 1}")
        need = lambda *tags: Op("", "need", need_ds=list(tags))
        side = [[], [], [], []]
        if i == 0:
            d = dma(c + S - 2)
            side[0] += d[:1]
            for j, o in enumerate(d[1:]):
                side[1 + j % 3].append(o)
        if i == 1:
            adv = dma_adv()
            side[0] += adv[0]
            side[1] += adv[1]
            side[2] += [Op(f"s_add_u32 {sr(sR)}, {sr(sR)}, {CH}"), Op(f"s_cmp_ge_u32 {sr(sR)}, {S * CH}"),
                        Op(f"s_cselect_b32 {sr(sR)}, 0, {sr(sR)}")]
            side[3] += [Op(f"v_add_u32 v{(R0, R1)[(c + 1) % 2]}, {sr(sR)}, v{vL16}")]
        s = []
        if i == TPC - 2:
            s += [Op("", "need", need_vm=[("D", c + 1, j) for j in range(ND)], need_ds=[("K", t + 1, 0)]), Op("s_barrier")]
        else:
            s += [need(("K", t + 1, 0))]
        s += [M32(b, KF, Q, NEG), rdK(t + 2, 0)] + side[0] + [E(0), E(1), E(2), E(3)]
        s += [need(("K", t + 1, 1)), M32(b, KF + 4, Q + 4, b), rdK(t + 2, 1)] + side[1]
        s += [E(4), E(5), E(6), E(7), C(0), C(1), C(2), C(3), E(8), E(9)]
        s += [need(("V", t, 0)), M32(O, VF, P, O), rdV(t + 1, 0)] + side[2] + [E(10), E(11), E(12), E(13), M16(P)]
        s += [E(14), E(15), C(4), C(5), C(6), C(7)]
        if t % (2 * TPC) == 2 * TPC - 1:
            s += [Op(f"s_sub_u32 {sr(sCNT)}, {sr(sCNT)}, 1")]
        s += [need(("V", t, 1)), M32(O, VF + 4, P + 4, O), rdV(t + 1, 1)] + side[3] + [M16(P + 4)]
        return s

    assert TPC >= 4

    def body(it):
        s = []
        for t in range(it * 2 * TPC, (it + 1) * 2 * TPC):
            s += tile(t)
        return s

    lines = resolve_waits(body, 3, pre)
    p(".p2align 5", f"L_{name}_loop:")
    p.ext(lines)
    p(f"s_cmp_lg_u32 {sr(sCNT)}, 0", f"s_cbranch_scc1 L_{name}_loop")
    stamp(p, 2)
    p("s_waitcnt vmcnt(0) lgkmcnt(0)", "s_nop 7")
    p(f"s_cmp_lg_u32 {sr(sMODE)}, 0", f"s_cbranch_scc1 L_{name}_out")
    p(f"v_max3_f32 v5, |v{O}|, |v{O + 1}|, |v{O + 2}|")
    for i in range(3, 15, 2):
        p(f"v_max3_f32 v5, v5, |v{O + i}|, |v{O + i + 1}|")
    p(f"v_max_f32 v5, v5, |v{O + 15}|")
    p("v_mov_b32 v6, 0")
    for i in range(16):
        p(f"v_fmac_f32 v6, 0, v{O + i}")
    p("v_mov_b32 v7, 0x7f000000", "v_cmp_nle_f32 s[36:37], v5, v7", "v_mov_b32 v7, 0x5d800000", f"v_cmp_nle_f32 s[38:39], v{L}, v7",
      "v_cmp_u_f32 vcc, v6, v6", "s_or_b64 s[36:37], s[36:37], s[38:39]", "s_or_b64 s[36:37], s[36:37], vcc",
      "s_cselect_b32 s30, 1, 0", "v_mov_b32 v5, s30", f"s_lshl_b32 s31, {sr(S_WAVE)}, 2", f"s_add_u32 s31, s31, {FLAG}", "v_mov_b32 v6, s31",
      "ds_write_b32 v6, v5", f"v_mov_b32 v6, {FLAG}", "s_waitcnt lgkmcnt(0)", "s_barrier",
      "ds_read_b128 v[8:11], v6", "ds_read_b128 v[12:15], v6 offset:16", "s_waitcnt lgkmcnt(0)",
      "v_or3_b32 v8, v8, v9, v10", "v_or3_b32 v12, v12, v13, v14", "v_or3_b32 v8, v8, v11, v15", "v_or_b32 v8, v8, v12",
      "v_readfirstlane_b32 s30, v8", "s_cmp_eq_u32 s30, 0", f"s_cbranch_scc1 L_{name}_out")
    p(f"s_mov_b32 {sr(sMODE)}, 1", f"s_mov_b32 s6, {8 * MB}", "s_mov_b32 s30, s34", "s_mov_b32 s31, 64", "v_mov_b32 v5, 0xff800000",
      f"L_{name}_maxloop:",
      f"buffer_load_dwordx4 {vr(KF, 4)}, v{vL16}, s[4:7], s30 offen",
      f"buffer_load_dwordx4 {vr(KF + 4, 4)}, v{vL16}, s[4:7], s30 offen offset:1024",
      "s_add_u32 s30, s30, 2048", "s_waitcnt vmcnt(0)",
      M32(SA, KF, Q, "0").text, M32(SA, KF + 4, Q + 4, SA).text)
    for i in range(0, 16, 2):
        p(f"v_max3_f32 v5, v5, v{SA + i}, v{SA + i + 1}")
    p("s_sub_u32 s31, s31, 1", "s_cmp_lg_u32 s31, 0", f"s_cbranch_scc1 L_{name}_maxloop")
    p("v_mov_b32 v6, v5", "v_permlane32_swap_b32 v5, v6", "v_max_f32 v5, v5, v6")
    for i in range(16):
        p(f"v_sub_f32 v{NEG + i}, 0, v5")
    p(f"s_branch L_{name}_start")
    p(f"L_{name}_out:")
    p(f"v_rcp_f32 v6, v{L}",
      "v_and_b32 v8, 15, v1", "v_lshlrev_b32 v8, 4, v8", "v_bfe_u32 v9, v1, 4, 1", "v_lshl_add_u32 v8, v9, 10, v8",
      "v_lshrrev_b32 v9, 5, v1", "v_lshl_add_u32 v8, v9, 8, v8", "v_mov_b32 v7, v6",
      f"s_lshl_b32 s30, {sr(sQB)}, 14", f"s_lshl_b32 s31, {sr(S_WAVE)}, 11", "s_add_u32 s30, s30, s31", "s_add_u32 s30, s30, s34")
    for i in range(0, 16, 2):
        p(f"v_pk_mul_f32 {vr(O + i, 2)}, {vr(O + i, 2)}, v[6:7]")
    for half in range(2):
        for d, r in enumerate((4 * half, 4 * half + 2, 8 + 4 * half, 10 + 4 * half)):
            p(f"v_cvt_pk_bf16_f32 v{P + 4 * half + d}, v{O + r}, v{O + r + 1}")
        p(f"buffer_store_dwordx4 {vr(P + 4 * half, 4)}, v8, s[12:15], s30 offen offset:{512 * half}")
    finish(p, name, 2, 8)
    return name, p, (124, 0), (256, 512, S * CH + 64)
```

```python
from asmlib import *

S_SRDW, S_SRDA = 4, 8
S_WAVE, S_MB, S_NB = 20, 21, 22
S_W, S_A, S_M, S_R, S_CNT, S_MEND, S_T0, S_T1 = 24, 25, 26, 27, 28, 29, 30, 31


class Gemm:
    def __init__(self, **k):
        self.extra_adv = lambda par: []
        self.swap = lambda nt: False
        self.fb = None
        self.AR = 4
        self.__dict__.update(k)
        self.R = self.D + 1
        self.NF = self.KS * self.NT
        self.NSL = self.NF * self.MT
        if self.fb is None:
            self.fb = self.NF - self.D
        assert self.fb <= self.NF - self.D
        assert (self.U * self.NF) % self.R == 0
        assert self.KT % self.U == 0
        if self.a_mode == "direct":
            assert (self.U * self.KS) % self.AR == 0
            self.nA = self.AR * self.MT * 4
        else:
            assert (self.U * self.KS) % 2 == 0
            self.AR = 2
            self.nA = 2 * self.MT * 4
        self.A0 = 0
        self.W0 = self.nA
        self.nagpr = self.nA + self.R * 4

    def acc(self, nt, mt):
        return self.ACC0 + (nt * self.MT + mt) * 4

    def areg(self, step, mt):
        return self.A0 + ((step % self.AR) * self.MT + mt) * 4

    def wreg(self, F):
        return self.W0 + (F % self.R) * 4

    def w_reads(self, t, f):
        ks, nt = divmod(f, self.NT)
        F = t * self.NF + f
        w = self.wreg(F)
        par = t % 2
        spec = self.rd(ks, nt, par)
        ops = []
        if spec[0] == "b128":
            _, b, off = spec
            ops.append(Op(f"ds_read_b128 {ar(w, 4)}, {vr(b)} offset:{off}", "ds", ("W", t, f, 0)))
        else:
            for u, (b, off) in enumerate(spec[1]):
                ops.append(Op(f"ds_read_b64_tr_b16 {ar(w + 2 * u, 2)}, {vr(b)} offset:{off}", "ds", ("W", t, f, u)))
        return ops

    def w_tags(self, t, f):
        return [o.tag for o in self.w_reads(t, f)]

    def a_reads_lds(self, step):
        t, ks = divmod(step, self.KS)
        b = self.rdA(t % 2)
        return [Op(f"ds_read_b128 {ar(self.areg(step, mt), 4)}, {vr(b)} offset:{self.offA(ks, mt)}", "ds", ("A", step, mt))
                for mt in range(self.MT)]

    def a_loads(self, step):
        return [Op(f"buffer_load_dwordx4 {ar(self.areg(step, mt), 4)}, {vr(self.vA)}, {sr(S_SRDA, 4)}, {sr(S_A)} offen offset:{mt * 1024}",
                   "vm", ("A", step, mt)) for mt in range(self.MT)]

    def dma_ops(self, t):
        out = []
        last = None
        for j, (v, srd, soff, m0off, imm) in enumerate(self.dma):
            pre = []
            if m0off != last:
                pre.append(Op(f"s_add_u32 m0, {sr(S_M)}, {m0off}" if m0off else f"s_mov_b32 m0, {sr(S_M)}"))
                last = m0off
            o = f" offset:{imm}" if imm else ""
            out.append((pre, Op(f"buffer_load_dwordx4 {vr(v)}, {sr(srd, 4)}, {sr(soff)} offen{o} lds", "vm", ("D", t, j))))
        return out

    def dma_advance(self):
        ops = [Op(f"s_add_u32 {sr(S_W)}, {sr(S_W)}, {self.w_step}")]
        if self.a_mode == "lds":
            ops.append(Op(f"s_add_u32 {sr(S_A)}, {sr(S_A)}, {self.a_step * self.KS}"))
        ops += [Op(f"s_add_u32 {sr(S_M)}, {sr(S_M)}, {self.STAGE}"),
                Op(f"s_cmp_ge_u32 {sr(S_M)}, {sr(S_MEND)}"),
                Op(f"s_cselect_b32 {sr(S_T0)}, {self.S * self.STAGE}, 0"),
                Op(f"s_sub_u32 {sr(S_M)}, {sr(S_M)}, {sr(S_T0)}")]
        return ops

    def rd_advance(self, par):
        ops = [Op(f"s_add_u32 {sr(S_R)}, {sr(S_R)}, {self.STAGE}"),
               Op(f"s_cmp_ge_u32 {sr(S_R)}, {self.S * self.STAGE}"),
               Op(f"s_cselect_b32 {sr(S_R)}, 0, {sr(S_R)}")]
        v = [Op(f"v_add_u32 {vr(dst)}, {sr(S_R)}, {vr(src)}") for dst, src in self.rd_bases(par)]
        v += [Op(x) for x in self.extra_adv(par)]
        return ops, v

    def mfma(self, step, nt, mt, F):
        c = vr(self.acc(nt, mt), 4)
        w, a = ar(self.wreg(F), 4), ar(self.areg(step, mt), 4)
        if self.swapf(nt):
            w, a = a, w
        return Op(f"v_mfma_f32_16x16x32_bf16 {c}, {w}, {a}, {c}", "mfma")

    def swapf(self, nt):
        return self.swap(nt)

    def tile(self, t, last_in_body=False):
        MT, NT, KS, NF, D = self.MT, self.NT, self.KS, self.NF, self.D
        gaps = [[] for _ in range(self.NSL)]
        vec = [0] * self.NSL
        sca = [0] * self.NSL

        def put(n, op, v):
            gaps[n].append(op)
            if v:
                vec[n] += 1
            else:
                sca[n] += 1

        for f in range(NF):
            tt, ff = divmod(f + D, NF)
            for u, o in enumerate(self.w_reads(t + tt, ff)):
                put(f * MT + min(u, MT - 1), o, True)
        bar_slot = self.fb * MT - 1

        def free_slots(lo, hi, n):
            cand = list(range(lo, hi))
            res = []
            for i in range(n):
                a = lo + (hi - lo) * i // n
                b = max(a + 1, lo + (hi - lo) * (i + 1) // n)
                best = min(range(a, min(b, hi)), key=lambda x: (vec[x], (x % MT) == MT - 1, x))
                res.append(best)
                vec[best] += 1
            for x in res:
                vec[x] -= 1
            return res

        pending_need = {}
        for ks in range(KS):
            step = t * KS + ks
            lo, hi = ks * NT * MT, (ks + 1) * NT * MT
            if self.a_mode == "lds":
                l2 = max(lo, bar_slot + 1) if ks == KS - 1 else lo
                h2 = max(l2 + MT, hi - self.a_margin)
                ops = self.a_reads_lds(step + 1)
                for n, o in zip(free_slots(l2, h2, MT), ops):
                    put(n, o, True)
                pending_need[hi - 1] = ("ds", [o.tag for o in ops])
            else:
                ops = self.a_loads(step - 1 + self.AR)
                sl = free_slots(lo, hi - 1, MT)
                for n, o in zip(sl, ops):
                    put(n, o, True)
                put(max(sl), Op(f"s_add_u32 {sr(S_A)}, {sr(S_A)}, {self.a_step}"), False)
                pending_need[hi - 1] = ("vm", [("A", step + 1, mt) for mt in range(MT)])
        dm = self.dma_ops(t + self.S - 2)
        sl = free_slots(1, bar_slot, len(dm))
        for i, (n, (pre, o)) in enumerate(zip(sl, dm)):
            prev = sl[i - 1] if i else -1
            for p in pre:
                put(n - 1 if n - 1 > prev else n, p, False)
            put(n, o, True)
        adv = self.dma_advance()
        n = max(sl)
        for k, o in enumerate(adv[:-3]):
            put(min(n + 1 + k // 2, self.NSL - 2), o, False)
        n2 = min(n + 1 + (len(adv) - 3 + 1) // 2, self.NSL - 2)
        for o in adv[-3:]:
            put(n2, o, False)
        so, vo = self.rd_advance((t + 1) % 2)
        for o in so:
            put(0 if self.NSL < 24 else 2, o, False)
        sl = free_slots(3, bar_slot - 1, len(vo))
        for n, o in zip(sl, vo):
            put(n, o, True)
        for f in range(NF):
            n = f * MT + MT - 1
            tt, ff = divmod(f + 1, NF)
            nd = self.w_tags(t + tt, ff)
            nv = None
            if n in pending_need:
                kind, tags = pending_need[n]
                if kind == "ds":
                    nd = nd + tags
                else:
                    nv = tags
            if n == bar_slot:
                nv = (nv or []) + [("D", t + 1, j) for j in range(len(self.dma))]
            gaps[n].append(Op("", "need", need_vm=nv, need_ds=nd))
            if n == bar_slot:
                gaps[n].append(Op("s_barrier"))
        seq = []
        for f in range(NF):
            ks, nt = divmod(f, NT)
            for mt in range(MT):
                n = f * MT + mt
                seq.append(self.mfma(t * KS + ks, nt, mt, t * NF + f))
                g = gaps[n]
                if last_in_body and n == self.NSL - 2:
                    g = g + [Op(f"s_sub_u32 {sr(S_CNT)}, {sr(S_CNT)}, 1")]
                seq += g
        return seq

    def body(self, it):
        seq = []
        for u in range(self.U):
            seq += self.tile(it * self.U + u, u == self.U - 1)
        return seq

    def prologue_loads(self):
        pre = []
        nt = self.S - 2
        for tv in range(-max(nt, (self.AR + self.KS - 2) // self.KS), 0):
            items = []
            td = tv + self.S - 2
            if td >= 0:
                for p, o in self.dma_ops(td):
                    items += p + [o]
                items += self.dma_advance()
            if self.a_mode == "direct":
                for ks in range(self.KS):
                    st = tv * self.KS + ks - 1 + self.AR
                    if st >= 0:
                        items += self.a_loads(st) + [Op(f"s_add_u32 {sr(S_A)}, {sr(S_A)}, {self.a_step}")]
            pre += items
        return pre

    def emit_start(self, p):
        self.pre = self.prologue_loads()
        p.ext(o.text for o in self.pre)

    def more_vm(self, p, lines):
        for x in lines:
            p(x)
            self.pre.append(Op(x, "vm", ("X", len(self.pre))))

    def emit_main(self, p):
        pre = list(self.pre)
        tags = [o.tag for o in pre if o.kind == "vm"]
        need = [("D", 0, j) for j in range(len(self.dma))]
        if self.a_mode == "direct":
            need += [("A", 0, mt) for mt in range(self.MT)]
        n = min(63, len(tags) - 1 - max(tags.index(x) for x in need))
        p(f"s_waitcnt vmcnt({n})", "s_barrier")
        first = []
        if self.a_mode == "lds":
            first += self.a_reads_lds(0)
        for f in range(self.D):
            first += self.w_reads(0, f)
        p.ext(o.text for o in first)
        nd = sum(len(self.w_reads(0, f)) for f in range(1, self.D))
        p(f"s_mov_b32 {sr(S_CNT)}, {self.KT // self.U}")
        p(f"s_waitcnt lgkmcnt({nd})")
        pre += first
        body = resolve_waits(self.body, 4, pre)
        lab = f"L_{self.name}_loop"
        p(".p2align 5", f"{lab}:")
        p.ext(body)
        p(f"s_cmp_lg_u32 {sr(S_CNT)}, 0", f"s_cbranch_scc1 {lab}")
```

```python
import sys
from asmlib import *
from gemm import *

NAME = "sequential_preLN__softmax_full_mha__glu_gated_bilinear__prompt"
MB = 1 << 20
WS_XN, WS_Q, WS_K, WS_V, WS_O, WS_HC, WS_ACT = 0, 4 * MB, 8 * MB, 12 * MB, 16 * MB, 20 * MB, 24 * MB
WS_SM = 40 * MB
SM_MEANX, SM_MEANH, SM_WB, SM_SSQ = 0, 8192, 16384, 32768
SM_SIZE = 32768 + 16 * 8192
ACT_SIZE = 112 * 128 * 1024
ARG_X, ARG_WQKV, ARG_WO, ARG_WG, ARG_WU, ARG_WD, ARG_OUT, ARG_DBG, ARG_WS = 0, 8, 16, 32, 40, 48, 56, 64, 72
CFG = dict(stamp=False)


def srd(p, d, ptr, off, size):
    if off:
        p(f"s_add_u32 {sr(d)}, {sr(ptr)}, {off}", f"s_addc_u32 {sr(d + 1)}, {sr(ptr + 1)}, 0")
    else:
        p(f"s_mov_b32 {sr(d)}, {sr(ptr)}", f"s_mov_b32 {sr(d + 1)}, {sr(ptr + 1)}")
    p(f"s_mov_b32 {sr(d + 2)}, {size}", f"s_mov_b32 {sr(d + 3)}, 0x20000")


def entry(p, name, nwg, args):
    p(f"{name}:")
    if CFG["stamp"]:
        p("s_memrealtime s[80:81]")
    p(f"s_cmp_ge_u32 s2, {nwg}", f"s_cbranch_scc1 L_{name}_end")
    for s, off in args:
        p(f"s_load_dwordx2 {sr(s, 2)}, s[0:1], {off}")
    if CFG["stamp"]:
        p(f"s_load_dwordx2 s[90:91], s[0:1], {ARG_WS}")
    p("v_lshrrev_b32 v1, 6, v0", f"v_readfirstlane_b32 {sr(S_WAVE)}, v1", "v_and_b32 v1, 63, v0")


def stamp(p, k):
    if CFG["stamp"]:
        p(f"s_memrealtime s[{80 + 2 * k}:{81 + 2 * k}]")


def finish(p, name, kid, nwaves=4):
    if CFG["stamp"]:
        p("s_waitcnt vmcnt(0)", "s_memrealtime s[88:89]", "s_waitcnt lgkmcnt(0)")
        p(f"s_mul_i32 s70, s2, {nwaves}", f"s_add_u32 s70, s70, {sr(S_WAVE)}", "s_lshl_b32 s70, s70, 5",
          f"s_add_u32 s70, s70, {64 * MB + kid * 131072}", "s_add_u32 s90, s90, s70", "s_addc_u32 s91, s91, 0",
          "v_mov_b32 v2, s80", "v_mov_b32 v3, s82", "v_mov_b32 v4, s84", "v_mov_b32 v5, s86", "v_mov_b32 v6, s88",
          "v_mov_b32 v1, 0", "s_mov_b64 exec, 1",
          "global_store_dwordx4 v1, v[2:5], s[90:91]", "global_store_dword v1, v6, s[90:91] offset:16")
    p(f"L_{name}_end:", "s_endpgm")


def xcd_map(p, a_bits, ma, nb_per):
    lm = ma.bit_length() - 1
    p("s_and_b32 s30, s2, 7", "s_lshr_b32 s31, s2, 3",
      f"s_and_b32 {sr(S_MB)}, s30, {(1 << a_bits) - 1}", f"s_lshl_b32 {sr(S_MB)}, {sr(S_MB)}, {lm}",
      f"s_and_b32 s32, s31, {ma - 1}", f"s_add_u32 {sr(S_MB)}, {sr(S_MB)}, s32",
      f"s_lshr_b32 {sr(S_NB)}, s30, {a_bits}", f"s_mul_i32 {sr(S_NB)}, {sr(S_NB)}, {nb_per}",
      f"s_lshr_b32 s32, s31, {lm}", f"s_add_u32 {sr(S_NB)}, {sr(S_NB)}, s32")


def zero_acc(p, g):
    for r in range(g.ACC0, g.ACC0 + g.MT * g.NT * 4):
        p(f"v_mov_b32 v{r}, 0")


def rd128_bases(p, src0, dst0):
    p("v_lshrrev_b32 v28, 2, v1", "v_lshlrev_b32 v29, 7, v28", "v_and_b32 v30, 3, v1", "v_lshl_add_u32 v29, v30, 3, v29",
      "v_bfe_u32 v28, v28, 1, 2")
    for c in range(4):
        p(f"v_xor_b32 v30, {c}, v28", f"v_lshl_add_u32 {vr(src0 + c)}, v30, 5, v29", f"v_mov_b32 {vr(dst0 + c)}, {vr(src0 + c)}")


def dma128_col(p, dst):
    p("v_bfe_u32 v28, v1, 4, 2",
      "v_bfe_u32 v29, v1, 1, 2",
      "v_xor_b32 v28, v28, v29",
      "v_and_b32 v29, 1, v1", "v_lshlrev_b32 v29, 4, v29",
      f"v_lshl_add_u32 {vr(dst)}, v28, 5, v29")


def sum_g(p, v, t):
    p(f"v_mov_b32 {vr(t)}, {vr(v)}", f"v_permlane16_swap_b32 {vr(t)}, {vr(v)}", f"v_add_f32 {vr(v)}, {vr(v)}, {vr(t)}",
      f"v_mov_b32 {vr(t)}, {vr(v)}", f"v_permlane32_swap_b32 {vr(t)}, {vr(v)}", f"v_add_f32 {vr(v)}, {vr(v)}, {vr(t)}")


def k0():
    name = "ln1_kernel"
    p = Prog()
    entry(p, name, 256, [(40, ARG_X), (42, ARG_WO), (44, ARG_WS), (46, ARG_WQKV)])
    p("v_and_b32 v2, 15, v1", "v_lshrrev_b32 v3, 4, v1",
      "v_lshlrev_b32 v4, 11, v2", "v_lshl_add_u32 v4, v3, 4, v4")
    p("s_waitcnt lgkmcnt(0)")
    p("s_cmp_lt_u32 s2, 128", "s_cselect_b32 s4, s40, s42", "s_cselect_b32 s5, s41, s43",
      "s_cselect_b32 s6, 4, 2", "s_lshl_b32 s6, s6, 20", "s_mov_b32 s7, 0x20000")
    srd(p, 8, 44, WS_XN, 4 * MB)
    srd(p, 12, 44, WS_SM, SM_SIZE)
    srd(p, 16, 46, 0, 6 * MB)
    p("s_and_b32 s21, s2, 127", "s_lshl_b32 s24, s21, 15", f"s_lshl_b32 s25, {sr(S_WAVE)}, 9", "s_add_u32 s24, s24, s25")
    p("s_cmp_ge_u32 s2, 192", f"s_cbranch_scc1 L_{name}_pf")
    for i in range(8):
        p(f"buffer_load_dwordx4 {vr(8 + 4 * i, 4)}, v4, s[4:7], s24 offen offset:{64 * i}")
    p(f"L_{name}_pf:")
    p("s_lshr_b32 s26, s2, 3", "s_mul_i32 s26, s26, 384", f"s_mul_i32 s27, {sr(S_WAVE)}, 96", "s_add_u32 s26, s26, s27",
      "s_and_b32 s27, s2, 7", "s_lshr_b32 s27, s27, 1", "s_lshl_b32 s27, s27, 9", "s_mov_b32 s28, 0x5556")
    for i in range(2):
        p(f"v_add_u32 v5, s26, v1" if i == 0 else "v_add_u32 v5, 64, v5")
        p("v_lshrrev_b32 v6, 2, v5",
          "v_lshlrev_b32 v6, 11, v6", "v_and_b32 v7, 3, v5", "v_lshl_add_u32 v6, v7, 7, v6")
        if i == 1:
            p("s_mov_b32 exec_hi, 0")
        p(f"buffer_load_dword v{72 + i}, v6, s[16:19], s27 offen")
    p("s_mov_b64 exec, -1")
    p("s_cmp_ge_u32 s2, 192", f"s_cbranch_scc1 L_{name}_fin")
    for i in range(8):
        p(f"s_waitcnt vmcnt({9 - i})")
        for d in range(4):
            s_, o = 8 + 4 * i + d, 80 + 8 * i + 2 * d
            p(f"v_lshlrev_b32 v{o}, 16, v{s_}", f"v_and_b32 v{o + 1}, 0xffff0000, v{s_}")
    def reduce_all(src_pairs, lds_off):
        p("v_add_f32 v6, v6, v7")
        sum_g(p, 6, 7)
        p(f"v_lshlrev_b32 v5, 4, v2", f"s_lshl_b32 s26, {sr(S_WAVE)}, 2", "v_add_u32 v7, s26, v5",
          f"ds_write_b32 v7, v6 offset:{lds_off}", "s_waitcnt lgkmcnt(0)", "s_barrier",
          f"ds_read_b128 v[76:79], v5 offset:{lds_off}", "s_waitcnt lgkmcnt(0)",
          "v_add_f32 v76, v76, v77", "v_add_f32 v78, v78, v79", "v_add_f32 v6, v76, v78")
    p("v_pk_add_f32 v[6:7], v[80:81], v[82:83]")
    for i in range(2, 32):
        p(f"v_pk_add_f32 v[6:7], v[6:7], {vr(80 + 2 * i, 2)}")
    reduce_all(None, 0)
    p("v_mul_f32 v74, 0x3a800000, v6")
    p("s_cmp_ge_u32 s2, 128", f"s_cbranch_scc1 L_{name}_wo")
    p("v_mov_b32 v75, v74")
    for i in range(32):
        p(f"v_pk_add_f32 {vr(80 + 2 * i, 2)}, {vr(80 + 2 * i, 2)}, v[74:75] neg_lo:[0,1] neg_hi:[0,1]")
    p("v_pk_mul_f32 v[6:7], v[80:81], v[80:81]")
    for i in range(1, 32):
        p(f"v_pk_fma_f32 v[6:7], {vr(80 + 2 * i, 2)}, {vr(80 + 2 * i, 2)}, v[6:7]")
    reduce_all(None, 256)
    p("v_mov_b32 v7, 0x3727c5ac", "v_fmac_f32 v7, 0x3a800000, v6", "v_rsq_f32 v6, v7", "s_nop 0", "v_mov_b32 v7, v6")
    p("v_lshlrev_b32 v5, 4, v1", f"s_lshl_b32 s24, {sr(S_WAVE)}, 20", "s_lshl_b32 s25, s21, 10", "s_add_u32 s24, s24, s25")
    for i in range(8):
        for d in range(4):
            o = 80 + 8 * i + 2 * d
            p(f"v_pk_mul_f32 {vr(o, 2)}, {vr(o, 2)}, v[6:7]")
        for d in range(4):
            o = 80 + 8 * i + 2 * d
            p(f"v_cvt_pk_bf16_f32 v{8 + 4 * i + d}, v{o}, v{o + 1}")
        p(f"buffer_store_dwordx4 {vr(8 + 4 * i, 4)}, v5, s[8:11], s24 offen", "s_add_u32 s24, s24, 131072")
    p(f"s_cmp_lg_u32 {sr(S_WAVE)}, 0", f"s_cbranch_scc1 L_{name}_fin")
    p("v_lshlrev_b32 v5, 2, v1", "s_mov_b64 exec, 0xffff", "s_lshl_b32 s24, s21, 6",
      f"buffer_store_dword v74, v5, s[12:15], s24 offen offset:{SM_MEANX}",
      f"s_branch L_{name}_fin")
    p(f"L_{name}_wo:")
    p(f"s_cmp_lg_u32 {sr(S_WAVE)}, 0", f"s_cbranch_scc1 L_{name}_fin")
    p("v_cvt_pk_bf16_f32 v8, v74, v74", "v_lshlrev_b32 v9, 16, v8", "v_sub_f32 v9, v74, v9", "v_cvt_pk_bf16_f32 v9, v9, v9",
      "v_cmp_eq_u32 vcc, 1, v3", "v_cndmask_b32 v8, v8, v9, vcc",
      "v_lshrrev_b32 v5, 2, v2", "v_lshlrev_b32 v5, 4, v5", "v_and_b32 v6, 3, v2", "v_lshl_add_u32 v5, v6, 1, v5",
      "v_lshl_add_u32 v5, v3, 6, v5", "s_mov_b32 exec_hi, 0",
      "s_lshr_b32 s24, s21, 1", "s_lshl_b32 s24, s24, 7", "s_and_b32 s25, s21, 1", "s_lshl_b32 s25, s25, 3",
      "s_add_u32 s24, s24, s25", f"s_add_u32 s24, s24, {SM_WB}",
      "buffer_store_short v8, v5, s[12:15], s24 offen")
    p(f"L_{name}_fin:")
    finish(p, name, 0)
    return name, p, (144, 0), (256, 256, 512)


def k1():
    name = "qkv_kernel"
    p = Prog()
    S, STAGE = CFG.get("k1_S", 5), 24576
    SRC, D0, D1 = 10, 14, 18
    g = Gemm(name="k1", MT=2, NT=12, KS=2, KT=16, U=CFG.get("k1_U", 2), S=S, STAGE=STAGE, D=7, a_mode="direct", AR=CFG.get("k1_AR", 4),
             ACC0=32, vA=9, w_step=64 * 6144, a_step=131072,
             dma=[(2 + j, S_SRDW, S_W, 0 if j < 4 else 4096, (j % 4) * 1024) for j in range(6)],
             rd=lambda ks, nt, par: ("tr", [((D0, D1)[par] + nt % 4, (nt // 4) * 8192 + (32 * ks + 16 * u) * 128) for u in range(2)]),
             rd_bases=lambda par: [((D0, D1)[par] + c, SRC + c) for c in range(4)],
             swap=lambda nt: nt >= 8)
    entry(p, name, 256, [(40, ARG_WQKV), (44, ARG_WS)])
    xcd_map(p, 1, 8, 4)
    dma128_col(p, 27)
    p(f"s_lshl_b32 s33, {sr(S_NB)}, 7", "v_add_u32 v27, s33, v27", "s_mov_b32 s34, 6144")
    for j in range(6):
        p(f"s_mul_i32 s30, {sr(S_WAVE)}, 6", f"s_add_u32 s30, s30, {j}", "s_lshr_b32 s31, s30, 3", "s_and_b32 s30, s30, 7",
          "s_lshl_b32 s30, s30, 3", "s_lshl_b32 s31, s31, 11",
          "v_lshrrev_b32 v28, 3, v1", "v_add_u32 v28, s30, v28",
          "v_and_b32 v29, 0x23, v28", "v_bfe_u32 v30, v28, 2, 2", "v_lshl_add_u32 v29, v30, 3, v29",
          "v_bfe_u32 v30, v28, 4, 1", "v_lshl_add_u32 v29, v30, 2, v29",
          "v_mul_lo_u32 v29, s34, v29", f"s_sub_u32 s31, s31, {(j % 4) * 1024}",
          f"v_add3_u32 v{2 + j}, v29, v27, s31")
    p("v_lshlrev_b32 v9, 4, v1")
    p("s_waitcnt lgkmcnt(0)")
    srd(p, S_SRDW, 40, 0, 6 * MB)
    srd(p, S_SRDA, 44, WS_XN, 4 * MB)
    p(f"s_mov_b32 {sr(S_W)}, 0", f"s_lshl_b32 {sr(S_A)}, {sr(S_MB)}, 13", f"s_lshl_b32 s30, {sr(S_WAVE)}, 11",
      f"s_add_u32 {sr(S_A)}, {sr(S_A)}, s30", f"s_mul_i32 {sr(S_M)}, {sr(S_WAVE)}, 6144",
      f"s_add_u32 {sr(S_MEND)}, {sr(S_M)}, {S * STAGE}", f"s_mov_b32 {sr(S_R)}, 0")
    g.emit_start(p)
    rd128_bases(p, SRC, D0)
    zero_acc(p, g)
    srd(p, 12, 44, WS_Q, 12 * MB)
    stamp(p, 1)
    g.emit_main(p)
    stamp(p, 2)
    p("v_and_b32 v2, 15, v1", "v_lshrrev_b32 v3, 4, v1", "v_lshlrev_b32 v4, 9, v3",
      "v_lshl_add_u32 v5, v2, 4, v4",
      "v_and_b32 v6, 7, v2", "v_lshl_add_u32 v6, v6, 4, v4", "v_lshrrev_b32 v7, 3, v2", "v_lshl_add_u32 v6, v7, 8, v6",
      f"s_lshl_b32 s30, {sr(S_NB)}, 18", f"s_lshl_b32 s31, {sr(S_MB)}, 13", "s_add_u32 s30, s30, s31",
      f"s_lshl_b32 s31, {sr(S_WAVE)}, 11", "s_add_u32 s30, s30, s31",
      "s_mov_b32 s36, 0x3e8293ee", "s_mov_b32 s37, 0x3e8293ee")
    T = 8
    tq = 0
    def tmp():
        nonlocal tq
        tq = (tq + 1) % 5
        return 12 + 4 * tq
    for hh in range(2):
        for sub in range(3):
            p(f"s_add_u32 s31, s30, {hh * 131072 + sub * 4 * MB}")
            for x in range(2):
                t = tmp()
                if sub < 2:
                    r0, r1 = g.acc(sub * 4 + 2 * hh, x), g.acc(sub * 4 + 2 * hh + 1, x)
                else:
                    r0, r1 = g.acc(8 + 2 * hh + x, 0), g.acc(8 + 2 * hh + x, 1)
                if sub == 0:
                    for r in (r0, r0 + 2, r1, r1 + 2):
                        p(f"v_pk_mul_f32 {vr(r, 2)}, {vr(r, 2)}, s[36:37]")
                for d, r in enumerate((r0, r0 + 2, r1, r1 + 2)):
                    p(f"v_cvt_pk_bf16_f32 v{t + d}, v{r}, v{r + 1}")
                va, off = (6, x * 128) if sub == 1 else (5, x * 256)
                p(f"buffer_store_dwordx4 {vr(t, 4)}, v{va}, s[12:15], s31 offen offset:{off}")
    finish(p, name, 1)
    return name, p, (32 + 96, g.nagpr), (256, 256, S * STAGE)


def k35(which):
    name = {3: "oproj_kernel", 5: "down_kernel"}[which]
    p = Prog()
    S, STAGE = CFG.get(f"k{which}_S", 5), 16384
    SRC, D0, D1 = 10, 14, 18
    X0, X1 = 22, 23
    WBOFF = S * STAGE
    NT = 5 if which == 3 else 4
    def rd(ks, nt, par):
        if nt == 4:
            return ("b128", (X0, X1)[par], ks * 128)
        return ("tr", [((D0, D1)[par] + nt, (32 * ks + 16 * u) * 128) for u in range(2)])
    g = Gemm(name=f"k{which}", MT=2, NT=NT, KS=4, KT=8 if which == 3 else 28, U=2, S=S, STAGE=STAGE, D=7, a_mode="direct", AR=8,
             ACC0=64, vA=9, w_step=128 * 2048, a_step=131072,
             dma=[(2 + j, S_SRDW, S_W, 0, j * 1024) for j in range(4)],
             rd=rd, rd_bases=lambda par: [((D0, D1)[par] + c, SRC + c) for c in range(4)])
    if which == 3:
        g.extra_adv = lambda par: [f"v_add_u32 v{(X0, X1)[par]}, 512, v{(X1, X0)[par]}"]
    entry(p, name, 256, [(40, ARG_WO if which == 3 else ARG_WD), (44, ARG_WS), (46, ARG_X if which == 3 else ARG_OUT)])
    xcd_map(p, 2, 4, 8)
    dma128_col(p, 27)
    p(f"s_lshl_b32 s33, {sr(S_NB)}, 7", f"s_lshl_b32 s30, {sr(S_WAVE)}, 16", "s_add_u32 s33, s33, s30",
      "v_lshrrev_b32 v28, 3, v1", "v_lshl_add_u32 v27, v28, 11, v27", "v_add_u32 v2, s33, v27")
    for j in range(1, 4):
        p(f"v_add_u32 v{2 + j}, {j * (8 * 2048 - 1024)}, v2")
    p("v_lshlrev_b32 v9, 4, v1")
    p("s_waitcnt lgkmcnt(0)")
    srd(p, S_SRDW, 40, 0, 2 * MB if which == 3 else 3584 * 2048)
    srd(p, S_SRDA, 44, WS_O if which == 3 else WS_ACT, 4 * MB if which == 3 else ACT_SIZE)
    srd(p, 12, 44, WS_SM, SM_SIZE)
    p(f"s_mov_b32 {sr(S_W)}, 0", f"s_lshl_b32 {sr(S_A)}, {sr(S_MB)}, 13", f"s_lshl_b32 s30, {sr(S_WAVE)}, 11",
      f"s_add_u32 {sr(S_A)}, {sr(S_A)}, s30", f"s_mov_b32 s38, {sr(S_A)}", f"s_lshl_b32 {sr(S_M)}, {sr(S_WAVE)}, 12",
      f"s_add_u32 {sr(S_MEND)}, {sr(S_M)}, {S * STAGE}", f"s_mov_b32 {sr(S_R)}, 0")
    if which == 3:
        p(f"s_lshl_b32 s30, {sr(S_WAVE)}, 10", f"s_add_u32 m0, s30, {WBOFF}", f"s_add_u32 s30, s30, {SM_WB}",
          "buffer_load_dwordx4 v9, s[12:15], s30 offen lds")
    g.emit_start(p)
    srd(p, 16, 46, 0, 4 * MB)
    srd(p, 48, 44, WS_HC, 4 * MB)
    p(f"s_lshl_b32 s39, {sr(S_MB)}, 7", f"s_lshl_b32 s30, {sr(S_WAVE)}, 5", "s_add_u32 s39, s39, s30",
      "v_and_b32 v24, 15, v1", "v_lshrrev_b32 v25, 4, v1", "v_lshlrev_b32 v26, 2, v24",
      "s_lshl_b32 s35, s39, 2")
    if which == 3:
        p("v_lshlrev_b32 v27, 11, v24", "v_lshl_add_u32 v27, v25, 3, v27",
          "s_lshl_b32 s36, s39, 11", f"s_lshl_b32 s30, {sr(S_NB)}, 7", "s_add_u32 s36, s36, s30", "s_add_u32 s37, s36, 32768")
        g.more_vm(p, [f"buffer_load_dwordx2 {vr(32 + 8 * mt + 2 * t, 2)}, v27, s[16:19], s{36 + mt} offen offset:{32 * t}"
                      for mt in range(2) for t in range(4)])
        g.more_vm(p, [f"buffer_load_dword v{48 + mt}, v26, s[12:15], s35 offen offset:{SM_MEANX + 64 * mt}" for mt in range(2)])
        p("v_and_b32 v28, 1, v1", "v_lshlrev_b32 v28, 6, v28", f"v_lshl_add_u32 v{X0}, v25, 4, v28", f"v_add_u32 v{X0}, {WBOFF}, v{X0}")
    else:
        p(f"s_lshl_b32 s36, {sr(S_NB)}, 18", "s_add_u32 s36, s36, s38", "s_add_u32 s37, s36, 131072",
          f"s_add_u32 s34, s35, {SM_MEANH}", "v_lshl_add_u32 v27, v25, 15, v26")
        g.more_vm(p, [f"buffer_load_dwordx4 {vr(32 + 8 * mt + 4 * kb, 4)}, v9, s[48:51], s{36 + kb} offen offset:{1024 * mt}"
                      for mt in range(2) for kb in range(2)])
        g.more_vm(p, [f"buffer_load_dword v{48 + mt}, v26, s[12:15], s34 offen offset:{64 * mt}" for mt in range(2)])
        for i in range(4):
            p(f"s_add_u32 s34, s35, {SM_SSQ + i * 8192}")
            g.more_vm(p, [f"buffer_load_dword v{50 + 4 * mt + i}, v27, s[12:15], s34 offen offset:{64 * mt}" for mt in range(2)])
    rd128_bases(p, SRC, D0)
    zero_acc(p, g)
    stamp(p, 1)
    g.emit_main(p)
    stamp(p, 2)
    if which == 3:
        p(f"s_lshl_b32 s36, {sr(S_NB)}, 18", "s_add_u32 s36, s36, s38", "s_add_u32 s37, s36, 131072",
          f"s_lshl_b32 s30, {sr(S_NB)}, 13", "s_add_u32 s30, s30, s35", f"s_add_u32 s30, s30, {SM_SSQ}",
          f"s_add_u32 s31, s35, {SM_MEANH}")
        for mt in range(2):
            e = g.acc(4, mt)
            m = 48 + mt
            p(f"v_add_f32 v{e}, v{e}, v{e + 1}", f"v_add_f32 v{m}, v{m}, v{e}")
            p(f"v_mov_b32 v2, 0", "v_mov_b32 v3, 0")
            for t in range(4):
                a = g.acc(t, mt)
                x = 32 + 8 * mt + 2 * t
                for d in range(2):
                    p(f"v_lshlrev_b32 v4, 16, v{x + d}", f"v_and_b32 v5, 0xffff0000, v{x + d}",
                      f"v_sub_f32 v4, v4, v{m}", f"v_sub_f32 v5, v5, v{m}",
                      f"v_pk_add_f32 {vr(a + 2 * d, 2)}, {vr(a + 2 * d, 2)}, v[4:5]",
                      f"v_pk_fma_f32 v[2:3], {vr(a + 2 * d, 2)}, {vr(a + 2 * d, 2)}, v[2:3]",
                      f"v_cvt_pk_bf16_f32 v{x + d}, v{a + 2 * d}, v{a + 2 * d + 1}")
                if t % 2 == 1:
                    p(f"buffer_store_dwordx4 {vr(x - 2, 4)}, v9, s[48:51], s{36 + t // 2} offen offset:{1024 * mt}")
            p("v_add_f32 v2, v2, v3")
            sum_g(p, 2, 3)
            p(f"v_mov_b32 v{6 + mt}, v2")
        p("s_mov_b64 exec, 0xffff")
        for mt in range(2):
            p(f"buffer_store_dword v{6 + mt}, v26, s[12:15], s30 offen offset:{64 * mt}")
        p(f"s_cmp_lg_u32 {sr(S_NB)}, 0", f"s_cbranch_scc1 L_{name}_fin")
        for mt in range(2):
            p(f"buffer_store_dword v{48 + mt}, v26, s[12:15], s31 offen offset:{64 * mt}")
        p(f"L_{name}_fin:")
    else:
        p("v_lshlrev_b32 v27, 11, v24", "v_and_b32 v28, 1, v25", "v_lshl_add_u32 v27, v28, 5, v27",
          "v_lshrrev_b32 v28, 1, v25", "v_lshl_add_u32 v27, v28, 4, v27",
          "s_lshl_b32 s36, s39, 11", f"s_lshl_b32 s30, {sr(S_NB)}, 7", "s_add_u32 s36, s36, s30", "s_add_u32 s37, s36, 32768")
        for mt in range(2):
            q = 50 + 4 * mt
            m = 48 + mt
            p(f"v_add_f32 v{q}, v{q}, v{q + 1}", f"v_add_f32 v{q + 2}, v{q + 2}, v{q + 3}", f"v_add_f32 v2, v{q}, v{q + 2}")
            sum_g(p, 2, 3)
            p("v_mov_b32 v3, 0x3727c5ac", "v_fmac_f32 v3, 0x3a800000, v2", "v_rcp_f32 v2, v3", "s_nop 0", "v_mov_b32 v3, v2")
            for t in range(4):
                a = g.acc(t, mt)
                x = 32 + 8 * mt + 2 * t
                for d in range(2):
                    p(f"v_lshlrev_b32 v4, 16, v{x + d}", f"v_and_b32 v5, 0xffff0000, v{x + d}",
                      f"v_add_f32 v4, v4, v{m}", f"v_add_f32 v5, v5, v{m}",
                      f"v_pk_fma_f32 v[4:5], {vr(a + 2 * d, 2)}, v[2:3], v[4:5]",
                      f"v_cvt_pk_bf16_f32 v{x + d}, v4, v5")
                if t % 2 == 1:
                    p(f"v_permlane16_swap_b32 v{x - 2}, v{x}", f"v_permlane16_swap_b32 v{x - 1}, v{x + 1}",
                      f"buffer_store_dwordx4 {vr(x - 2, 4)}, v27, s[16:19], s{36 + mt} offen offset:{64 * (t // 2)}")
    finish(p, name, which)
    return name, p, (64 + NT * 2 * 4, g.nagpr), (256, 256, S * STAGE + (4096 if which == 3 else 0))


def k4():
    name = "glu_kernel"
    p = Prog()
    S, STAGE = CFG.get("k4_S", 5), 28672
    SRC, D0, D1 = 10, 11, 12
    g = Gemm(name="k4", MT=4, NT=14, KS=2, KT=16, U=CFG.get("k4_U", 2), S=S, STAGE=STAGE, D=CFG.get("k4_D", 3), a_mode="direct",
             AR=CFG.get("k4_AR", 4), ACC0=32, vA=9, w_step=64 * 7168, a_step=131072,
             dma=[(2 + j, S_SRDW, S_W, 0 if j < 4 else 4096, (j % 4) * 1024) for j in range(7)],
             rd=lambda ks, nt, par: ("tr", [((D0, D1)[par], (nt // 7) * 14336 + (32 * ks + 16 * u) * 224 + (nt % 7) * 32) for u in range(2)]),
             rd_bases=lambda par: [((D0, D1)[par], SRC)])
    entry(p, name, 256, [(40, ARG_WG), (42, ARG_WU), (44, ARG_WS)])
    xcd_map(p, 1, 4, 8)
    assert all((e * 4682) >> 16 == e // 14 for e in range(896))
    p(f"s_and_b32 s30, {sr(S_WAVE)}, 1", "s_mul_i32 s30, s30, 448", f"s_and_b32 s33, {sr(S_NB)}, 1", "s_lshl_b32 s33, s33, 1",
      f"s_mul_i32 s35, {sr(S_NB)}, 224", "s_movk_i32 s34, 7168", "v_add_u32 v27, s30, v1")
    for j in range(7):
        p(f"v_add_u32 v28, {64 * j}, v27" if j else "v_mov_b32 v28, v27",
          "v_mul_u32_u24 v29, 4682, v28", "v_lshrrev_b32 v29, 16, v29",
          "v_mul_u32_u24 v30, 14, v29", "v_sub_u32 v30, v28, v30", "v_add_u32 v30, s33, v30",
          "v_subrev_u32 v31, 14, v30", "v_min_u32 v30, v30, v31",
          "v_mul_lo_u32 v29, s34, v29", "v_lshl_add_u32 v29, v30, 4, v29",
          f"s_sub_u32 s31, s35, {(j % 4) * 1024}", f"v_add_u32 v{2 + j}, s31, v29")
    p("v_lshlrev_b32 v9, 4, v1")
    p("s_waitcnt lgkmcnt(0)")
    p(f"s_cmp_lt_u32 {sr(S_WAVE)}, 2", "s_cselect_b32 s4, s40, s42", "s_cselect_b32 s5, s41, s43",
      f"s_mov_b32 s6, {1024 * 7168}", "s_mov_b32 s7, 0x20000")
    srd(p, S_SRDA, 44, WS_HC, 4 * MB)
    p(f"s_mov_b32 {sr(S_W)}, 0", f"s_lshl_b32 {sr(S_A)}, {sr(S_MB)}, 14", f"s_lshl_b32 s30, {sr(S_WAVE)}, 12",
      f"s_add_u32 {sr(S_A)}, {sr(S_A)}, s30", f"s_mov_b32 s38, {sr(S_A)}", f"s_mul_i32 {sr(S_M)}, {sr(S_WAVE)}, 7168",
      f"s_add_u32 {sr(S_MEND)}, {sr(S_M)}, {S * STAGE}", f"s_mov_b32 {sr(S_R)}, 0")
    g.emit_start(p)
    p("v_lshrrev_b32 v28, 2, v1", "v_mul_u32_u24 v28, 224, v28", "v_and_b32 v29, 3, v1", f"v_lshl_add_u32 v{SRC}, v29, 3, v28",
      f"v_mov_b32 v{D0}, v{SRC}")
    zero_acc(p, g)
    srd(p, 12, 44, WS_ACT, ACT_SIZE)
    stamp(p, 1)
    g.emit_main(p)
    stamp(p, 2)
    p(f"s_lshr_b32 s30, {sr(S_NB)}, 1", "s_mul_i32 s30, s30, 7", f"s_and_b32 s31, {sr(S_NB)}, 1",
      "s_add_u32 s32, s30, 3", "s_lshl_b32 s32, s32, 17", "s_add_u32 s32, s32, s38", "s_lshl_b32 s33, s31, 3", "s_add_u32 s32, s32, s33",
      "s_lshl_b32 s31, s31, 2", "s_add_u32 s30, s30, s31", "s_lshl_b32 s30, s30, 17", "s_add_u32 s30, s30, s38")
    tq = 0
    for pr in range(4):
        for mt in range(4):
            t = 12 + 4 * tq
            tq = (tq + 1) % 5
            tiles = (2 * pr, 2 * pr + 1) if pr < 3 else (6,)
            for i, nt in enumerate(tiles):
                a, b = g.acc(nt, mt), g.acc(nt + 7, mt)
                p(f"v_pk_mul_f32 {vr(a, 2)}, {vr(a, 2)}, {vr(b, 2)}", f"v_pk_mul_f32 {vr(a + 2, 2)}, {vr(a + 2, 2)}, {vr(b + 2, 2)}")
            for i, nt in enumerate(tiles):
                a = g.acc(nt, mt)
                p(f"v_cvt_pk_bf16_f32 v{t + 2 * i}, v{a}, v{a + 1}", f"v_cvt_pk_bf16_f32 v{t + 2 * i + 1}, v{a + 2}, v{a + 3}")
            if pr < 3:
                p(f"buffer_store_dwordx4 {vr(t, 4)}, v9, s[12:15], s30 offen offset:{1024 * mt}")
            else:
                p(f"buffer_store_dwordx2 {vr(t, 2)}, v9, s[12:15], s32 offen offset:{1024 * mt}")
        if pr < 2:
            p("s_add_u32 s30, s30, 131072")
    finish(p, name, 4)
    return name, p, (256, g.nagpr), (256, 256, S * STAGE)


from attn import k2


def build(kernels=None):
    ks = [k0(), k1(), k2(CFG, entry, finish, stamp, srd), k35(3), k4(), k35(5)]
    if kernels is not None:
        ks = [k for i, k in enumerate(ks) if i in kernels]
    head = open(f"cdna_kernels/{NAME}.s.ref").read().split("; Override launch")[0]
    out = head
    out += "; Generated by a script (software-pipelined MFMA kernels); one launch per phase.\n"
    for name, p, regs, (grid, blk, lds) in ks:
        out += f"; @launch kernel={name} grid=({grid},1,1) block=({blk},1,1) lds={lds}\n"
    out += '.amdgcn_target "amdgcn-amd-amdhsa--gfx950"\n'
    for name, p, regs, _ in ks:
        out += kernel_header(name) + p.text()
    for name, p, regs, _ in ks:
        out += kernel_desc(name, regs[0], regs[1])
    return out


if __name__ == "__main__":
    dst = f"cdna_kernels/{NAME}.s"
    for a in sys.argv[1:]:
        if "=" in a:
            k, v = a.split("=")
            if k == "out":
                dst = v
            else:
                CFG[k] = int(v)
    open(dst, "w").write(build())
    print("wrote", dst)
```

```python
from asmlib import *
from gemm import S_WAVE

MB = 1 << 20
WS_Q, WS_K, WS_V, WS_O = 4 * MB, 8 * MB, 12 * MB, 16 * MB
ARG_WS = 72


def k2(CFG, entry, finish, stamp, srd):
    if CFG.get("k2_8w", 0):
        import attn8
        return attn8.k2(CFG, entry, finish, stamp, srd)
    name = "attn_kernel"
    p = Prog()
    TPC = CFG.get("k2_TPC", 4)
    S = CFG.get("k2_S", 6)
    PF = CFG.get("k2_pf", 1)
    CH = TPC * 4096
    NCH = 64 // TPC
    ND = CH // 4096
    FLAG = S * CH
    SS, P, O, L, NEG, Q, KF, VF, SEL = (16, 32), 48, (56, 72), (88, 92), (96, 112), (128, 136), 144, 152, 160
    vL16, R0, R1, vPF, vPD = 2, 3, 4, 164, 165
    sW, sM, sMEND, sR, sCNT, sMODE, sHEAD, sQB = 24, 26, 29, 27, 28, 33, 21, 22
    entry(p, name, 256, [(44, ARG_WS)] + ([(46, 32), (48, 40), (50, 48)] if PF else []))
    p("s_and_b32 s30, s2, 7", "s_lshr_b32 s31, s2, 3", "s_lshl_b32 s30, s30, 2", "s_and_b32 s32, s31, 3",
      f"s_add_u32 {sr(sHEAD)}, s30, s32", f"s_lshr_b32 {sr(sQB)}, s31, 2",
      f"v_lshlrev_b32 v{vL16}, 4, v1", f"s_mov_b32 {sr(sMODE)}, 0",
      f"s_lshl_b32 s34, {sr(sHEAD)}, 17", f"s_lshl_b32 s30, {sr(sQB)}, 14", f"s_lshl_b32 s31, {sr(S_WAVE)}, 12",
      "s_add_u32 s30, s30, s31", "s_add_u32 s41, s30, s34")
    p("s_waitcnt lgkmcnt(0)")
    srd(p, 4, 44, WS_K, 8 * MB)
    srd(p, 8, 44, WS_Q, 4 * MB)
    p(f"L_{name}_start:")
    p(f"s_lshr_b32 s30, {sr(S_WAVE)}, 1", "s_lshl_b32 s30, s30, 22", f"s_and_b32 s31, {sr(S_WAVE)}, 1",
      f"s_mul_i32 s31, s31, {ND * 1024}", f"s_add_u32 {sr(sW)}, s34, s30", f"s_add_u32 {sr(sW)}, {sr(sW)}, s31",
      f"s_add_u32 s35, {sr(sW)}, {NCH * CH // 2}",
      f"s_mul_i32 {sr(sM)}, {sr(S_WAVE)}, {ND * 1024}", f"s_add_u32 {sr(sMEND)}, {sr(sM)}, {S * CH}",
      f"s_mov_b32 {sr(sR)}, 0", f"s_mov_b32 s6, {8 * MB}")

    def dma(c):
        ops = []
        for j in range(ND):
            if j % 4 == 0:
                ops.append(Op(f"s_add_u32 m0, {sr(sM)}, {j * 1024}" if j else f"s_mov_b32 m0, {sr(sM)}"))
                if j:
                    ops.append(Op(f"s_add_u32 {sr(sW)}, {sr(sW)}, 4096"))
            o = f" offset:{(j % 4) * 1024}" if j % 4 else ""
            ops.append(Op(f"buffer_load_dwordx4 v{vL16}, s[4:7], {sr(sW)} offen{o} lds", "vm", ("D", c, j)))
        return ops

    def dma_adv():
        return [[Op(f"s_add_u32 {sr(sW)}, {sr(sW)}, {CH // 2 - (ND - 1) // 4 * 4096}"), Op(f"s_cmp_lt_u32 {sr(sW)}, s35"), Op("s_cselect_b32 s6, s6, 0")],
                [Op(f"s_add_u32 {sr(sM)}, {sr(sM)}, {CH}"), Op(f"s_cmp_ge_u32 {sr(sM)}, {sr(sMEND)}"),
                 Op(f"s_cselect_b32 s30, {S * CH}, 0"), Op(f"s_sub_u32 {sr(sM)}, {sr(sM)}, s30")]]

    pre = []
    for c in range(S - 2):
        pre += dma(c)
        for grp in dma_adv():
            pre += grp
        if c == 0:
            pre += [Op(f"buffer_load_dwordx4 {vr(Q[0] + 4 * k, 4)}, v{vL16}, s[8:11], s41 offen offset:{1024 * k}", "vm", ("Q", k)) for k in range(4)]
    p.ext(o.text for o in pre)
    for r in list(range(O[0], O[0] + 32)) + list(range(L[0], L[0] + 8)) + list(range(P + 4, P + 8)):
        p(f"v_mov_b32 v{r}, 0")
    p(f"v_mov_b32 v{R0}, v{vL16}")
    p("v_lshrrev_b32 v5, 4, v1", "v_lshrrev_b32 v6, 2, v1", "v_xor_b32 v5, v5, v6", "v_and_b32 v5, 1, v5",
      "v_subrev_u32 v5, 1, v5", "v_and_b32 v5, 0x3f803f80, v5")
    for i in range(4):
        p(f"v_mov_b32 v{SEL + i}, v5")
    srd(p, 12, 44, WS_O, 4 * MB)
    if PF:
        p(f"s_cmp_eq_u32 {sr(S_WAVE)}, 1", "s_cselect_b32 s16, s48, s46", "s_cselect_b32 s17, s49, s47",
          f"s_cmp_eq_u32 {sr(S_WAVE)}, 2", "s_cselect_b32 s16, s50, s16", "s_cselect_b32 s17, s51, s17",
          f"s_cmp_eq_u32 {sr(S_WAVE)}, 3", f"s_cselect_b32 s18, 0, {3584 * 2048}", "s_mov_b32 s19, 0x20000",
          "s_lshl_b32 s40, s2, 15", f"v_lshrrev_b32 v{vPF}, 1, v1", f"v_lshlrev_b32 v{vPF}, 7, v{vPF}")

    def rdK(t, u):
        c, i = divmod(t, TPC)
        return Op(f"ds_read_b128 {vr(KF + 4 * u, 4)}, v{(R0, R1)[c % 2]} offset:{i * 2048 + u * 1024}", "ds", ("K", t, u))

    def rdV(t, u):
        c, i = divmod(t, TPC)
        return Op(f"ds_read_b128 {vr(VF + 4 * u, 4)}, v{(R0, R1)[c % 2]} offset:{CH // 2 + i * 2048 + u * 1024}", "ds", ("V", t, u))

    def M32(d, a, b, c):
        return Op(f"v_mfma_f32_32x32x16_bf16 {vr(d, 16)}, {vr(a, 4)}, {vr(b, 4)}, {c if isinstance(c, str) else vr(c, 16)}", "mfma")

    def M16(l, b):
        return Op(f"v_mfma_f32_16x16x32_bf16 {vr(l, 4)}, {vr(SEL, 4)}, {vr(b, 4)}, {vr(l, 4)}", "mfma")

    def rowmax(dst, s, first):
        if first:
            p(f"v_max3_f32 v{dst}, v{s}, v{s + 1}, v{s + 2}")
            for i in range(3, 15, 2):
                p(f"v_max3_f32 v{dst}, v{dst}, v{s + i}, v{s + i + 1}")
            p(f"v_max_f32 v{dst}, v{dst}, v{s + 15}")
        else:
            for i in range(0, 16, 2):
                p(f"v_max3_f32 v{dst}, v{dst}, v{s + i}, v{s + i + 1}")

    def setneg():
        for a in range(2):
            p(f"v_mov_b32 v7, v{5 + a}", f"v_permlane32_swap_b32 v{5 + a}, v7", f"v_max_f32 v{5 + a}, v{5 + a}, v7")
            for i in range(16):
                p(f"v_sub_f32 v{NEG[a] + i}, 0, v{5 + a}")

    stamp(p, 1)
    p(f"s_waitcnt vmcnt({(S - 3) * ND})", "s_barrier")
    p(rdK(0, 0).text, rdK(0, 1).text)
    d = rdV(0, 1)
    d.tag = ("V", -1, 1)
    first = [d, rdV(0, 0)]
    p.ext(o.text for o in first)
    p("s_waitcnt lgkmcnt(2)")
    p(f"s_cmp_lg_u32 {sr(sMODE)}, 0", f"s_cbranch_scc1 L_{name}_havemax")
    for a in range(2):
        p(M32(SS[a], KF, Q[a], "0").text, M32(SS[a], KF + 4, Q[a] + 4, SS[a]).text)
    for a in range(2):
        rowmax(5 + a, SS[a], True)
    setneg()
    p(f"L_{name}_havemax:")
    p(M32(SS[0], KF, Q[0], NEG[0]).text, M32(SS[0], KF + 4, Q[0] + 4, SS[0]).text)
    p(f"s_mov_b32 {sr(sCNT)}, {NCH // 2}", "s_waitcnt lgkmcnt(0)", "s_nop 7")
    pre += [rdK(0, 0), rdK(0, 1)] + first

    def unit(u):
        t, a = divmod(u, 2)
        c, i = divmod(t, TPC)
        sa, sb = SS[u % 2], SS[(u + 1) % 2]
        E = lambda r: Op(f"v_exp_f32 v{sa + r}, v{sa + r}")
        C = lambda k: Op(f"v_cvt_pk_bf16_f32 v{P + k}, v{sa + 2 * k}, v{sa + 2 * k + 1}")
        need = lambda *tags: Op("", "need", need_ds=list(tags))
        sc = [[] for _ in range(6)]
        ve = [[] for _ in range(6)]
        ui = 2 * i + a
        if a == 0:
            ve[0].append(rdK(t + 1, 0))
            ve[1].append(rdK(t + 1, 1))
            ve[2].append(rdV(t, 1))
            sc[3].append(need(("V", t, 0)))
            sc[5].append(need(("K", t + 1, 0), ("K", t + 1, 1)))
        else:
            sc[1].append(need(("V", t, 1)))
            ve[4].append(rdV(t + 1, 0))
        d = dma(c + S - 2)
        groups, cur = [], []
        for o in d:
            cur.append(o)
            if o.kind == "vm":
                groups.append(cur)
                cur = []
        per = (len(groups) + 1) // 2
        if a == 1 and i < 2:
            for k, grp in enumerate(groups[i * per:(i + 1) * per]):
                slot = (0, 2, 3, 5)[k]
                sc[slot] += grp[:-1]
                ve[slot].append(grp[-1])
        if ui == 4:
            adv = dma_adv()
            sc[0] += adv[0][:1]
            sc[1] += adv[0][1:]
            sc[2] += adv[1][:1]
            sc[4] += adv[1][1:]
        if ui == 0:
            sc[0] += [Op(f"s_add_u32 {sr(sR)}, {sr(sR)}, {CH}")]
            sc[1] += [Op(f"s_cmp_ge_u32 {sr(sR)}, {S * CH}")]
            sc[2] += [Op(f"s_cselect_b32 {sr(sR)}, 0, {sr(sR)}")]
        if ui == 2:
            ve[3] += [Op(f"v_add_u32 v{(R0, R1)[(c + 1) % 2]}, {sr(sR)}, v{vL16}")]
        if PF and ui == 5 and c % 2 == 0:
            for k in range(8 // (NCH // 2)):
                ve[2 * k] += [Op(f"buffer_load_dword v{vPD}, v{vPF}, s[16:19], s40 offen", "vm", ("PF", c, k))]
                sc[2 * k + 2] += [Op("s_add_u32 s40, s40, 4096")]
        if ui == 2 * TPC - 3:
            sc[5] += [Op("", "need", need_vm=[("D", c + 1, j) for j in range(ND)]), Op("s_barrier")]
        if u % (4 * TPC) == 4 * TPC - 1:
            sc[3] += [Op(f"s_sub_u32 {sr(sCNT)}, {sr(sCNT)}, 1")]
            sc[5] += [Op(f"s_cmp_lg_u32 {sr(sCNT)}, 0")]
        an, ap = (u + 1) % 2, (u - 1) % 2
        mf = [M32(sb, KF, Q[an], NEG[an]), M32(sb, KF + 4, Q[an] + 4, sb), M32(O[ap], VF + 4, P + 4, O[ap]), M16(L[ap], P + 4),
              M32(O[a], VF, P, O[a]), M16(L[a], P)]
        va = [[E(0), E(1), E(2), E(3)], [E(4), E(5), E(6), E(7)], [C(0), C(1), C(2), C(3), E(8), E(9)], [E(10), E(11)],
              [E(12), E(13), E(14), E(15)], [C(4), C(5), C(6), C(7)]]
        s = []
        for k in range(6):
            s += [mf[k]] + sc[k] + ve[k] + va[k]
        return s

    assert TPC >= 4

    def body(it):
        s = []
        for u in range(it * 4 * TPC, (it + 1) * 4 * TPC):
            s += unit(u)
        return s

    lines = resolve_waits(body, 3, pre)
    p(".p2align 5", f"L_{name}_loop:")
    p.ext(lines)
    p(f"s_cbranch_scc1 L_{name}_loop")
    p(M32(O[1], VF + 4, P + 4, O[1]).text, M16(L[1], P + 4).text)
    stamp(p, 2)
    p("s_waitcnt vmcnt(0) lgkmcnt(0)", "s_nop 7", "s_nop 3")
    p(f"s_cmp_lg_u32 {sr(sMODE)}, 0", f"s_cbranch_scc1 L_{name}_out")
    p(f"v_mul_f32 v6, 0, v{O[0]}", f"v_mul_f32 v7, 0, v{O[0] + 1}")
    for i in range(2, 32, 2):
        p(f"v_pk_fma_f32 v[6:7], {vr(O[0] + i, 2)}, 0, v[6:7] op_sel_hi:[1,0,1]")
    p(f"v_max_f32 v5, v{L[0]}, v{L[1]}", "v_mov_b32 v8, 0x5d800000",
      f"v_cmp_u_f32 s[36:37], v{L[0]}, v{L[1]}", "v_cmp_nle_f32 s[38:39], v5, v8",
      "v_cmp_u_f32 vcc, v6, v7", "s_or_b64 s[36:37], s[36:37], s[38:39]", "s_or_b64 s[36:37], s[36:37], vcc",
      "s_cselect_b32 s30, 1, 0", "v_mov_b32 v5, s30", f"s_lshl_b32 s31, {sr(S_WAVE)}, 2", f"s_add_u32 s31, s31, {FLAG}", "v_mov_b32 v6, s31",
      "ds_write_b32 v6, v5", f"v_mov_b32 v6, {FLAG}", "s_waitcnt lgkmcnt(0)", "s_barrier",
      "ds_read_b128 v[8:11], v6", "s_waitcnt lgkmcnt(0)",
      "v_or3_b32 v8, v8, v9, v10", "v_or_b32 v8, v8, v11",
      "v_readfirstlane_b32 s30, v8", "s_cmp_eq_u32 s30, 0", f"s_cbranch_scc1 L_{name}_out")
    p(f"s_mov_b32 {sr(sMODE)}, 1", f"s_mov_b32 s6, {8 * MB}", "s_mov_b32 s30, s34", "s_mov_b32 s31, 64",
      "v_mov_b32 v5, 0xff800000", "v_mov_b32 v6, 0xff800000",
      f"L_{name}_maxloop:",
      f"buffer_load_dwordx4 {vr(KF, 4)}, v{vL16}, s[4:7], s30 offen",
      f"buffer_load_dwordx4 {vr(KF + 4, 4)}, v{vL16}, s[4:7], s30 offen offset:1024",
      "s_add_u32 s30, s30, 2048", "s_waitcnt vmcnt(0)")
    for a in range(2):
        p(M32(SS[a], KF, Q[a], "0").text, M32(SS[a], KF + 4, Q[a] + 4, SS[a]).text)
    for a in range(2):
        rowmax(5 + a, SS[a], False)
    p("s_sub_u32 s31, s31, 1", "s_cmp_lg_u32 s31, 0", f"s_cbranch_scc1 L_{name}_maxloop")
    setneg()
    p(f"s_branch L_{name}_start")
    p(f"L_{name}_out:")
    p(f"v_rcp_f32 v6, v{L[0]}", f"v_rcp_f32 v10, v{L[1]}",
      "v_and_b32 v8, 15, v1", "v_lshlrev_b32 v8, 4, v8", "v_bfe_u32 v9, v1, 4, 1", "v_lshl_add_u32 v8, v9, 10, v8",
      "v_lshrrev_b32 v9, 5, v1", "v_lshl_add_u32 v8, v9, 8, v8", "v_mov_b32 v7, v6", "v_mov_b32 v11, v10")
    for a in range(2):
        for i in range(0, 16, 2):
            p(f"v_pk_mul_f32 {vr(O[a] + i, 2)}, {vr(O[a] + i, 2)}, {vr(6 + 4 * a, 2)}")
        for half in range(2):
            t = SS[0] + 8 * a + 4 * half
            for d, r in enumerate((4 * half, 4 * half + 2, 8 + 4 * half, 10 + 4 * half)):
                p(f"v_cvt_pk_bf16_f32 v{t + d}, v{O[a] + r}, v{O[a] + r + 1}")
            p(f"buffer_store_dwordx4 {vr(t, 4)}, v8, s[12:15], s41 offen offset:{2048 * a + 512 * half}" + (" sc1" if CFG.get("k2_st", 1) else ""))
    finish(p, name, 2, 4)
    return name, p, (168, 0), (256, 256, S * CH + 64)
```

```python
from asmlib import *
from gemm import S_WAVE

MB = 1 << 20
WS_Q, WS_K, WS_V, WS_O = 4 * MB, 8 * MB, 12 * MB, 16 * MB
ARG_WS = 72


def k2(CFG, entry, finish, stamp, srd):
    name = "attn_kernel"
    p = Prog()
    TPC = CFG.get("k2_TPC", 4)
    S = CFG.get("k2_S", 6)
    CH = TPC * 4096
    NCH = 64 // TPC
    ND = CH // 8192
    FLAG = S * CH
    SA, SB, P, O, L, NEG, Q, KF, VF, SEL = 16, 32, 48, 56, 72, 80, 96, 104, 112, 120
    vL16, R0, R1 = 2, 3, 4
    sW, sM, sMEND, sR, sCNT, sMODE, sHEAD, sQB = 24, 26, 29, 27, 28, 33, 21, 22
    PF = CFG.get("k2_pf", 1)
    entry(p, name, 256, [(44, ARG_WS)] + ([(46, 32), (48, 40), (50, 48)] if PF else []))
    p("s_and_b32 s30, s2, 7", "s_lshr_b32 s31, s2, 3", "s_lshl_b32 s30, s30, 2", "s_and_b32 s32, s31, 3",
      f"s_add_u32 {sr(sHEAD)}, s30, s32", f"s_lshr_b32 {sr(sQB)}, s31, 2",
      f"v_lshlrev_b32 v{vL16}, 4, v1", f"s_mov_b32 {sr(sMODE)}, 0")
    p("v_lshrrev_b32 v5, 4, v1", "v_lshrrev_b32 v6, 2, v1", "v_xor_b32 v5, v5, v6", "v_and_b32 v5, 1, v5",
      "v_subrev_u32 v5, 1, v5", "v_and_b32 v5, 0x3f803f80, v5")
    for i in range(4):
        p(f"v_mov_b32 v{SEL + i}, v5")
    p("s_waitcnt lgkmcnt(0)")
    srd(p, 4, 44, WS_K, 8 * MB)
    srd(p, 8, 44, WS_Q, 4 * MB)
    srd(p, 12, 44, WS_O, 4 * MB)
    if PF:
        p(f"s_lshr_b32 s30, {sr(S_WAVE)}, 1", "s_cmp_eq_u32 s30, 1", "s_cselect_b32 s16, s48, s46", "s_cselect_b32 s17, s49, s47",
          "s_cmp_eq_u32 s30, 2", "s_cselect_b32 s16, s50, s16", "s_cselect_b32 s17, s51, s17",
          "s_cmp_eq_u32 s30, 3", f"s_cselect_b32 s18, 0, {3584 * 2048}", "s_mov_b32 s19, 0x20000",
          f"s_and_b32 s30, {sr(S_WAVE)}, 1", "s_lshl_b32 s30, s30, 14", "s_lshl_b32 s40, s2, 15", "s_add_u32 s40, s40, s30",
          "v_lshrrev_b32 v124, 2, v1", "v_lshlrev_b32 v124, 7, v124")
    p(f"s_lshl_b32 s34, {sr(sHEAD)}, 17", f"s_lshl_b32 s30, {sr(sQB)}, 14", f"s_lshl_b32 s31, {sr(S_WAVE)}, 11",
      "s_add_u32 s30, s30, s31", "s_add_u32 s30, s30, s34")
    p(f"buffer_load_dwordx4 {vr(Q, 4)}, v{vL16}, s[8:11], s30 offen",
      f"buffer_load_dwordx4 {vr(Q + 4, 4)}, v{vL16}, s[8:11], s30 offen offset:1024")
    p(f"L_{name}_start:")
    p(f"s_lshr_b32 s30, {sr(S_WAVE)}, 2", "s_lshl_b32 s30, s30, 22", f"s_and_b32 s31, {sr(S_WAVE)}, 3",
      f"s_mul_i32 s31, s31, {ND * 1024}", f"s_add_u32 {sr(sW)}, s34, s30", f"s_add_u32 {sr(sW)}, {sr(sW)}, s31",
      f"s_add_u32 s35, {sr(sW)}, {NCH * CH // 2}",
      f"s_mul_i32 {sr(sM)}, {sr(S_WAVE)}, {ND * 1024}", f"s_add_u32 {sr(sMEND)}, {sr(sM)}, {S * CH}",
      f"s_mov_b32 {sr(sR)}, 0", f"s_mov_b32 s6, {8 * MB}")

    def dma(c):
        ops = [Op(f"s_mov_b32 m0, {sr(sM)}")]
        for j in range(ND):
            o = f" offset:{j * 1024}" if j else ""
            ops.append(Op(f"buffer_load_dwordx4 v{vL16}, s[4:7], {sr(sW)} offen{o} lds", "vm", ("D", c, j)))
        return ops

    def dma_adv():
        return [[Op(f"s_add_u32 {sr(sW)}, {sr(sW)}, {CH // 2}"), Op(f"s_cmp_lt_u32 {sr(sW)}, s35"), Op("s_cselect_b32 s6, s6, 0")],
                [Op(f"s_add_u32 {sr(sM)}, {sr(sM)}, {CH}"), Op(f"s_cmp_ge_u32 {sr(sM)}, {sr(sMEND)}"),
                 Op(f"s_cselect_b32 s30, {S * CH}, 0"), Op(f"s_sub_u32 {sr(sM)}, {sr(sM)}, s30")]]

    pre = []
    for c in range(S - 2):
        pre += dma(c)
        for grp in dma_adv():
            pre += grp
    p.ext(o.text for o in pre)
    for r in list(range(O, O + 16)) + list(range(L, L + 4)) + list(range(P + 4, P + 8)):
        p(f"v_mov_b32 v{r}, 0")
    p(f"v_mov_b32 v{R0}, v{vL16}")

    def rdK(t, u):
        c, i = divmod(t, TPC)
        return Op(f"ds_read_b128 {vr(KF + 4 * u, 4)}, v{(R0, R1)[c % 2]} offset:{i * 2048 + u * 1024}", "ds", ("K", t, u))

    def rdV(t, u):
        c, i = divmod(t, TPC)
        return Op(f"ds_read_b128 {vr(VF + 4 * u, 4)}, v{(R0, R1)[c % 2]} offset:{CH // 2 + i * 2048 + u * 1024}", "ds", ("V", t, u))

    def M32(d, a, b, c):
        return Op(f"v_mfma_f32_32x32x16_bf16 {vr(d, 16)}, {vr(a, 4)}, {vr(b, 4)}, {c if isinstance(c, str) else vr(c, 16)}", "mfma")

    def M16(b):
        return Op(f"v_mfma_f32_16x16x32_bf16 {vr(L, 4)}, {vr(SEL, 4)}, {vr(b, 4)}, {vr(L, 4)}", "mfma")

    stamp(p, 1)
    p(f"s_waitcnt vmcnt({(S - 3) * ND})", "s_barrier")
    p(rdK(0, 0).text, rdK(0, 1).text, "s_waitcnt lgkmcnt(0)")
    p(f"s_cmp_lg_u32 {sr(sMODE)}, 0", f"s_cbranch_scc1 L_{name}_havemax")
    p(M32(SA, KF, Q, "0").text, M32(SA, KF + 4, Q + 4, SA).text)
    p(f"v_max3_f32 v5, v{SA}, v{SA + 1}, v{SA + 2}")
    for i in range(3, 15, 2):
        p(f"v_max3_f32 v5, v5, v{SA + i}, v{SA + i + 1}")
    p(f"v_max_f32 v5, v5, v{SA + 15}", "v_mov_b32 v6, v5", "v_permlane32_swap_b32 v5, v6", "v_max_f32 v5, v5, v6")
    for i in range(16):
        p(f"v_sub_f32 v{NEG + i}, 0, v5")
    p(f"L_{name}_havemax:")
    p(M32(SA, KF, Q, NEG).text, M32(SA, KF + 4, Q + 4, SA).text)
    d = rdV(0, 1)
    d.tag = ("V", -1, 1)
    first = [rdK(1, 0), rdK(1, 1), d, rdV(0, 0)]
    p.ext(o.text for o in first)
    p(f"s_mov_b32 {sr(sCNT)}, {NCH // 2}", "s_nop 7")
    pre += first

    def tile(t):
        c, i = divmod(t, TPC)
        a, b = (SA, SB) if t % 2 == 0 else (SB, SA)
        E = lambda r: Op(f"v_exp_f32 v{a + r}, v{a + r}")
        C = lambda k: Op(f"v_cvt_pk_bf16_f32 v{P + k}, v{a + 2 * k}, v{a + 2 * k + 1}")
        need = lambda *tags: Op("", "need", need_ds=list(tags))
        side = [[], [], [], []]
        if i == 0:
            d = dma(c + S - 2)
            side[0] += d[:1]
            for j, o in enumerate(d[1:]):
                side[1 + j % 3].append(o)
        if i == 1:
            adv = dma_adv()
            side[0] += adv[0]
            side[1] += adv[1]
            side[2] += [Op(f"s_add_u32 {sr(sR)}, {sr(sR)}, {CH}"), Op(f"s_cmp_ge_u32 {sr(sR)}, {S * CH}"),
                        Op(f"s_cselect_b32 {sr(sR)}, 0, {sr(sR)}")]
            side[3] += [Op(f"v_add_u32 v{(R0, R1)[(c + 1) % 2]}, {sr(sR)}, v{vL16}")]
        if PF and i == TPC - 1 and c % 2 == 0:
            for k in range(8 // (NCH // 2)):
                side[0] += [Op("buffer_load_dword v125, v124, s[16:19], s40 offen", "vm", ("PF", c, k)), Op("s_add_u32 s40, s40, 2048")]
        s = []
        if i == TPC - 2:
            s += [Op("", "need", need_vm=[("D", c + 1, j) for j in range(ND)], need_ds=[("K", t + 1, 0), ("K", t + 1, 1)]), Op("s_barrier")]
        else:
            s += [need(("K", t + 1, 0), ("K", t + 1, 1))]
        s += [M32(b, KF, Q, NEG), rdK(t + 2, 0)] + side[0] + [E(0), E(1), E(2), E(3)]
        s += [M32(b, KF + 4, Q + 4, b), rdK(t + 2, 1)] + side[1] + [E(4), E(5), E(6), E(7)]
        s += [need(("V", t - 1, 1), ("V", t, 0)), M32(O, VF + 4, P + 4, O), rdV(t, 1)] + side[2] + [C(0), C(1), C(2), C(3), E(8), E(9)]
        s += [M16(P + 4), E(10), E(11)]
        s += [M32(O, VF, P, O), rdV(t + 1, 0)] + side[3] + [E(12), E(13), E(14), E(15)]
        if t % (2 * TPC) == 2 * TPC - 1:
            s += [Op(f"s_sub_u32 {sr(sCNT)}, {sr(sCNT)}, 1")]
        s += [M16(P), C(4), C(5), C(6), C(7)]
        return s

    assert TPC >= 4

    def body(it):
        s = []
        for t in range(it * 2 * TPC, (it + 1) * 2 * TPC):
            s += tile(t)
        return s

    lines = resolve_waits(body, 3, pre)
    p(".p2align 5", f"L_{name}_loop:")
    p.ext(lines)
    p(f"s_cmp_lg_u32 {sr(sCNT)}, 0", f"s_cbranch_scc1 L_{name}_loop")
    p("s_waitcnt lgkmcnt(0)", M32(O, VF + 4, P + 4, O).text, M16(P + 4).text)
    stamp(p, 2)
    p("s_waitcnt vmcnt(0) lgkmcnt(0)", "s_nop 7", "s_nop 3")
    p(f"s_cmp_lg_u32 {sr(sMODE)}, 0", f"s_cbranch_scc1 L_{name}_out")
    p(f"v_max3_f32 v5, |v{O}|, |v{O + 1}|, |v{O + 2}|")
    for i in range(3, 15, 2):
        p(f"v_max3_f32 v5, v5, |v{O + i}|, |v{O + i + 1}|")
    p(f"v_max_f32 v5, v5, |v{O + 15}|")
    p("v_mov_b32 v6, 0")
    for i in range(16):
        p(f"v_fmac_f32 v6, 0, v{O + i}")
    p("v_mov_b32 v7, 0x7f000000", "v_cmp_nle_f32 s[36:37], v5, v7", "v_mov_b32 v7, 0x5d800000", f"v_cmp_nle_f32 s[38:39], v{L}, v7",
      "v_cmp_u_f32 vcc, v6, v6", "s_or_b64 s[36:37], s[36:37], s[38:39]", "s_or_b64 s[36:37], s[36:37], vcc",
      "s_cselect_b32 s30, 1, 0", "v_mov_b32 v5, s30", f"s_lshl_b32 s31, {sr(S_WAVE)}, 2", f"s_add_u32 s31, s31, {FLAG}", "v_mov_b32 v6, s31",
      "ds_write_b32 v6, v5", f"v_mov_b32 v6, {FLAG}", "s_waitcnt lgkmcnt(0)", "s_barrier",
      "ds_read_b128 v[8:11], v6", "ds_read_b128 v[12:15], v6 offset:16", "s_waitcnt lgkmcnt(0)",
      "v_or3_b32 v8, v8, v9, v10", "v_or3_b32 v12, v12, v13, v14", "v_or3_b32 v8, v8, v11, v15", "v_or_b32 v8, v8, v12",
      "v_readfirstlane_b32 s30, v8", "s_cmp_eq_u32 s30, 0", f"s_cbranch_scc1 L_{name}_out")
    p(f"s_mov_b32 {sr(sMODE)}, 1", f"s_mov_b32 s6, {8 * MB}", "s_mov_b32 s30, s34", "s_mov_b32 s31, 64", "v_mov_b32 v5, 0xff800000",
      f"L_{name}_maxloop:",
      f"buffer_load_dwordx4 {vr(KF, 4)}, v{vL16}, s[4:7], s30 offen",
      f"buffer_load_dwordx4 {vr(KF + 4, 4)}, v{vL16}, s[4:7], s30 offen offset:1024",
      "s_add_u32 s30, s30, 2048", "s_waitcnt vmcnt(0)",
      M32(SA, KF, Q, "0").text, M32(SA, KF + 4, Q + 4, SA).text)
    for i in range(0, 16, 2):
        p(f"v_max3_f32 v5, v5, v{SA + i}, v{SA + i + 1}")
    p("s_sub_u32 s31, s31, 1", "s_cmp_lg_u32 s31, 0", f"s_cbranch_scc1 L_{name}_maxloop")
    p("v_mov_b32 v6, v5", "v_permlane32_swap_b32 v5, v6", "v_max_f32 v5, v5, v6")
    for i in range(16):
        p(f"v_sub_f32 v{NEG + i}, 0, v5")
    p(f"s_branch L_{name}_start")
    p(f"L_{name}_out:")
    p(f"v_rcp_f32 v6, v{L}",
      "v_and_b32 v8, 15, v1", "v_lshlrev_b32 v8, 4, v8", "v_bfe_u32 v9, v1, 4, 1", "v_lshl_add_u32 v8, v9, 10, v8",
      "v_lshrrev_b32 v9, 5, v1", "v_lshl_add_u32 v8, v9, 8, v8", "v_mov_b32 v7, v6",
      f"s_lshl_b32 s30, {sr(sQB)}, 14", f"s_lshl_b32 s31, {sr(S_WAVE)}, 11", "s_add_u32 s30, s30, s31", "s_add_u32 s30, s30, s34")
    for i in range(0, 16, 2):
        p(f"v_pk_mul_f32 {vr(O + i, 2)}, {vr(O + i, 2)}, v[6:7]")
    for half in range(2):
        for d, r in enumerate((4 * half, 4 * half + 2, 8 + 4 * half, 10 + 4 * half)):
            p(f"v_cvt_pk_bf16_f32 v{P + 4 * half + d}, v{O + r}, v{O + r + 1}")
        p(f"buffer_store_dwordx4 {vr(P + 4 * half, 4)}, v8, s[12:15], s30 offen offset:{512 * half}")
    finish(p, name, 2, 8)
    return name, p, (126, 0), (256, 512, S * CH + 64)
```

```python
from asmlib import *

S_SRDW, S_SRDA = 4, 8
S_WAVE, S_MB, S_NB = 20, 21, 22
S_W, S_A, S_M, S_R, S_CNT, S_MEND, S_M0 = 24, 25, 26, 27, 28, 29, 23


class Gemm:
    def __init__(self, **k):
        self.extra_adv = lambda par: []
        self.swap = lambda nt: False
        self.fb = None
        self.AR = 4
        self.wait_stride = 1
        self.zigzag = True
        self.__dict__.update(k)
        self.R = self.D + 1
        self.NF = self.KS * self.NT
        self.NSL = self.NF * self.MT
        if self.fb is None:
            self.fb = self.NF - self.D
        assert self.fb <= self.NF - self.D
        assert (self.U * self.NF) % self.R == 0
        assert self.KT % self.U == 0
        if self.a_mode == "direct":
            assert (self.U * self.KS) % self.AR == 0
            self.nA = self.AR * self.MT * 4
        else:
            assert (self.U * self.KS) % 2 == 0
            self.AR = 2
            self.nA = 2 * self.MT * 4
        self.A0 = 0
        self.W0 = self.nA
        self.nagpr = self.nA + self.R * 4

    def acc(self, nt, mt):
        return self.ACC0 + (nt * self.MT + mt) * 4

    def areg(self, step, mt):
        return self.A0 + ((step % self.AR) * self.MT + mt) * 4

    def wreg(self, F):
        return self.W0 + (F % self.R) * 4

    def w_reads(self, t, f):
        ks, nt = divmod(f, self.NT)
        F = t * self.NF + f
        w = self.wreg(F)
        par = t % 2
        spec = self.rd(ks, nt, par)
        ops = []
        if spec[0] == "b128":
            _, b, off = spec
            ops.append(Op(f"ds_read_b128 {ar(w, 4)}, {vr(b)} offset:{off}", "ds", ("W", t, f, 0)))
        else:
            for u, (b, off) in enumerate(spec[1]):
                ops.append(Op(f"ds_read_b64_tr_b16 {ar(w + 2 * u, 2)}, {vr(b)} offset:{off}", "ds", ("W", t, f, u)))
        return ops

    def w_tags(self, t, f):
        return [o.tag for o in self.w_reads(t, f)]

    def a_reads_lds(self, step):
        t, ks = divmod(step, self.KS)
        b = self.rdA(t % 2)
        return [Op(f"ds_read_b128 {ar(self.areg(step, mt), 4)}, {vr(b)} offset:{self.offA(ks, mt)}", "ds", ("A", step, mt))
                for mt in range(self.MT)]

    def a_loads(self, step):
        return [Op(f"buffer_load_dwordx4 {ar(self.areg(step, mt), 4)}, {vr(self.vA)}, {sr(S_SRDA, 4)}, {sr(S_A)} offen offset:{mt * 1024}",
                   "vm", ("A", step, mt)) for mt in range(self.MT)]

    def dma_ops(self, t):
        out = []
        last = None
        for j, (v, srd, soff, m0off, imm) in enumerate(self.dma):
            pre = []
            if m0off != last:
                pre.append(Op(f"s_add_u32 m0, {sr(S_M)}, {m0off}" if m0off else f"s_mov_b32 m0, {sr(S_M)}"))
                last = m0off
            o = f" offset:{imm}" if imm else ""
            out.append((pre, Op(f"buffer_load_dwordx4 {vr(v)}, {sr(srd, 4)}, {sr(soff)} offen{o} lds", "vm", ("D", t, j))))
        return out

    def dma_advance(self):
        ops = [[Op(f"s_add_u32 {sr(S_W)}, {sr(S_W)}, {self.w_step}")]]
        if self.a_mode == "lds":
            ops.append([Op(f"s_add_u32 {sr(S_A)}, {sr(S_A)}, {self.a_step * self.KS}")])
        ops += [[Op(f"s_add_u32 {sr(S_M)}, {sr(S_M)}, {self.STAGE}")],
                [Op(f"s_cmp_ge_u32 {sr(S_M)}, {sr(S_MEND)}"), Op(f"s_cselect_b32 {sr(S_M)}, {sr(S_M0)}, {sr(S_M)}")]]
        return ops

    def rd_advance(self, par):
        ops = [Op(f"s_add_u32 {sr(S_R)}, {sr(S_R)}, {self.STAGE}"),
               Op(f"s_cmp_ge_u32 {sr(S_R)}, {self.S * self.STAGE}"),
               Op(f"s_cselect_b32 {sr(S_R)}, 0, {sr(S_R)}")]
        v = [Op(f"v_add_u32 {vr(dst)}, {sr(S_R)}, {vr(src)}") for dst, src in self.rd_bases(par)]
        v += [Op(x) for x in self.extra_adv(par)]
        return ops, v

    def mfma(self, step, nt, mt, F):
        c = vr(self.acc(nt, mt), 4)
        w, a = ar(self.wreg(F), 4), ar(self.areg(step, mt), 4)
        if self.swapf(nt):
            w, a = a, w
        return Op(f"v_mfma_f32_16x16x32_bf16 {c}, {w}, {a}, {c}", "mfma")

    def swapf(self, nt):
        return self.swap(nt)

    def tile(self, t, last_in_body=False):
        MT, NT, KS, NF, D, NSL = self.MT, self.NT, self.KS, self.NF, self.D, self.NSL
        vec = [[] for _ in range(NSL)]
        pre = [[] for _ in range(NSL)]
        post = [[] for _ in range(NSL)]

        for f in range(NF):
            tt, ff = divmod(f + D, NF)
            for u, o in enumerate(self.w_reads(t + tt, ff)):
                vec[f * MT + min(u, MT - 1)].append(o)
        bar_slot = self.fb * MT - 1
        busy = lambda x: len(vec[x]) + (2 if x == bar_slot else 0)

        def spread(lo, hi, ops):
            n, res, last = len(ops), [], lo - 1
            for i, o in enumerate(ops):
                a = max(lo + (hi - lo) * i // n, last + 1)
                b = max(a + 1, lo + (hi - lo) * (i + 1) // n)
                best = min(range(a, b), key=lambda x: (busy(x), x))
                vec[best].append(o)
                res.append(best)
                last = best
            return res

        def cap(x):
            return (3, 2, 1, 0, 0)[min(4, len(vec[x]))] - len(pre[x]) - len(post[x])

        def scalar(ops, lo, hi, after_vec=False):
            cand = [x for x in range(lo, hi + 1) if cap(x) >= len(ops) and x != bar_slot]
            x = cand[0] if cand else max(range(lo, hi + 1), key=lambda y: (cap(y), -y))
            ops = list(ops)
            if not pre[x] and not (after_vec and x == lo) and not post[x]:
                pre[x].append(ops.pop(0))
            post[x] += ops
            return x

        a_need = {}
        for ks in range(KS):
            step = t * KS + ks
            kind = "ds" if self.a_mode == "lds" else "vm"
            a_need[(ks + 1) * NT * MT - 1] = (kind, [("A", step + 1, mt) for mt in range(MT)])
        WS = self.wait_stride
        for f in range(NF):
            n = f * MT + MT - 1
            nd, nv = [], None
            if (f + 1) % WS == 0:
                for k in range(1, WS + 1):
                    tt, ff = divmod(f + k, NF)
                    nd += self.w_tags(t + tt, ff)
            if n in a_need:
                kind, tags = a_need[n]
                if kind == "ds":
                    nd = nd + tags
                else:
                    nv = tags
            if n == bar_slot:
                nv = (nv or []) + [("D", t + 1, j) for j in range(len(self.dma))]
            if nd or nv:
                pre[n].append(Op("", "need", need_vm=nv, need_ds=nd or None))
            if n == bar_slot:
                post[n].append(Op("s_barrier"))
        if self.a_mode == "lds":
            for ks in range(KS):
                lo, hi = ks * NT * MT, (ks + 1) * NT * MT
                l2 = max(lo, bar_slot + 1) if ks == KS - 1 else lo
                spread(l2, max(l2 + MT, hi - self.a_margin), self.a_reads_lds(t * KS + ks + 1))
        dm = self.dma_ops(t + self.S - 2)
        a_last, sl = [], []
        for ks in range(KS):
            lo, hi = ks * NT * MT, (ks + 1) * NT * MT
            d = [o for _, o in dm[len(dm) * ks // KS: len(dm) * (ks + 1) // KS]]
            a = self.a_loads(t * KS + ks - 1 + self.AR) if self.a_mode == "direct" else []
            keyed = [((k + 0.3) / len(a), o) for k, o in enumerate(a)] + [((k + 0.6) / len(d), o) for k, o in enumerate(d)]
            ops = [o for _, o in sorted(keyed, key=lambda x: x[0])]
            n, last = len(ops), lo - 1
            h2 = hi - (5 if ks == KS - 1 else 0)
            l2 = lo + (1 if ks == 0 else 0)
            for k, o in enumerate(ops):
                tgt = l2 + (h2 - l2) * (k + 0.5) / n
                cand = [x for x in range(max(l2, last + 1), h2) if abs(x - tgt) <= max(1.0, (h2 - l2) / n / 2 - 0.5)] or [min(last + 1, hi - 1)]
                best = min(cand, key=lambda x: (busy(x), abs(x - tgt)))
                vec[best].append(o)
                last = best
                if o.tag[0] == "D":
                    sl.append(best)
                else:
                    a_pos = best
            if a:
                a_last.append((a_pos, hi))
        so, vo = self.rd_advance((t + 1) % 2)
        vsl = spread(min(6, bar_slot - len(vo) - 1), bar_slot - 1, vo)
        for i, (n, (pr, o)) in enumerate(zip(sl, dm)):
            if pr:
                lo = sl[i - 1] if i else 0
                best = [x for x in range(n - 1, lo - 1, -1) if cap(x) >= 1]
                x = best[0] if best else n - 1
                scalar(pr, x, x, after_vec=(i > 0 and x == lo))
        x = scalar(so[:1], 0, vsl[0] - 2)
        scalar(so[1:], x + 1, vsl[0] - 1)
        for n, hi in a_last:
            scalar([Op(f"s_add_u32 {sr(S_A)}, {sr(S_A)}, {self.a_step}")], n, hi - 1, after_vec=True)
        adv = self.dma_advance()
        x = max(sl)
        first = True
        for grp in adv:
            x = scalar(grp, x if first else x + 1, NSL - 1, after_vec=first)
            x = min(x, NSL - 2)
            first = False
        if last_in_body:
            x = scalar([Op(f"s_sub_u32 {sr(S_CNT)}, {sr(S_CNT)}, 1")], 0, NSL - 2)
        seq = []
        for f in range(NF):
            ks, nt = divmod(f, NT)
            order = range(MT) if (not self.zigzag or f % 2 == 0) else range(MT - 1, -1, -1)
            for k, mt in enumerate(order):
                n = f * MT + k
                seq.append(self.mfma(t * KS + ks, nt, mt, t * NF + f))
                v = sorted(vec[n], key=lambda o: o.text.startswith("v_"))
                seq += pre[n] + v + post[n]
        return seq

    def body(self, it):
        seq = []
        for u in range(self.U):
            seq += self.tile(it * self.U + u, u == self.U - 1)
        return seq

    def prologue_loads(self):
        pre = []
        nt = self.S - 2
        for tv in range(-max(nt, (self.AR + self.KS - 2) // self.KS), 0):
            items = []
            td = tv + self.S - 2
            if td >= 0:
                for p, o in self.dma_ops(td):
                    items += p + [o]
                for grp in self.dma_advance():
                    items += grp
            if self.a_mode == "direct":
                for ks in range(self.KS):
                    st = tv * self.KS + ks - 1 + self.AR
                    if st >= 0:
                        items += self.a_loads(st) + [Op(f"s_add_u32 {sr(S_A)}, {sr(S_A)}, {self.a_step}")]
            pre += items
        return pre

    def emit_start(self, p):
        p(f"s_mov_b32 {sr(S_M0)}, {sr(S_M)}")
        self.pre = self.prologue_loads()
        p.ext(o.text for o in self.pre)

    def more_vm(self, p, lines):
        for x in lines:
            p(x)
            self.pre.append(Op(x, "vm", ("X", len(self.pre))))

    def emit_main(self, p):
        pre = list(self.pre)
        tags = [o.tag for o in pre if o.kind == "vm"]
        need = [("D", 0, j) for j in range(len(self.dma))]
        if self.a_mode == "direct":
            need += [("A", 0, mt) for mt in range(self.MT)]
        n = min(63, len(tags) - 1 - max(tags.index(x) for x in need))
        p(f"s_waitcnt vmcnt({n})", "s_barrier")
        self.after_bar()
        first = []
        if self.a_mode == "lds":
            first += self.a_reads_lds(0)
        for f in range(self.D):
            first += self.w_reads(0, f)
        p.ext(o.text for o in first)
        nd = sum(len(self.w_reads(0, f)) for f in range(self.wait_stride, self.D))
        p(f"s_mov_b32 {sr(S_CNT)}, {self.KT // self.U}")
        p(f"s_waitcnt lgkmcnt({nd})")
        pre += first
        body = resolve_waits(self.body, 4, pre)
        dbg = getattr(self, "dbg", 0)
        if dbg & 1:
            body = [x for x in body if not (x.startswith("buffer_load") and not x.endswith("lds"))]
        if dbg & 2:
            body = [x for x in body if not (x.startswith("buffer_load") and x.endswith("lds"))]
        if dbg & 4:
            body = [x for x in body if not x.startswith("ds_read")]
        if dbg & 8:
            body = [x for x in body if not x.startswith("s_barrier")]
        if dbg & 16:
            body = [x for x in body if not x.startswith("v_mfma")]
        lab = f"L_{self.name}_loop"
        p(".p2align 5", f"{lab}:")
        p.ext(body)
        p(f"s_cmp_lg_u32 {sr(S_CNT)}, 0", f"s_cbranch_scc1 {lab}")
```

```python
import sys
from asmlib import *
from gemm import *

NAME = "sequential_preLN__softmax_full_mha__glu_gated_bilinear__prompt"
MB = 1 << 20
WS_XN, WS_Q, WS_K, WS_V, WS_O, WS_HC, WS_ACT = 0, 4 * MB, 8 * MB, 12 * MB, 16 * MB, 20 * MB, 24 * MB
WS_SM = 40 * MB
SM_MEANX, SM_MEANH, SM_WB, SM_SSQ = 0, 8192, 16384, 32768
SM_SIZE = 32768 + 16 * 8192
ACT_SIZE = 112 * 128 * 1024
ARG_X, ARG_WQKV, ARG_WO, ARG_WG, ARG_WU, ARG_WD, ARG_OUT, ARG_DBG, ARG_WS = 0, 8, 16, 32, 40, 48, 56, 64, 72
CFG = dict(stamp=False)


def stf(k):
    return {0: "", 1: " sc1", 2: " nt", 3: " sc0 sc1"}[CFG.get(f"k{k}_st", 1)]


def srd(p, d, ptr, off, size):
    if off:
        p(f"s_add_u32 {sr(d)}, {sr(ptr)}, {off}", f"s_addc_u32 {sr(d + 1)}, {sr(ptr + 1)}, 0")
    else:
        p(f"s_mov_b32 {sr(d)}, {sr(ptr)}", f"s_mov_b32 {sr(d + 1)}, {sr(ptr + 1)}")
    p(f"s_mov_b32 {sr(d + 2)}, {size}", f"s_mov_b32 {sr(d + 3)}, 0x20000")


def entry(p, name, nwg, args):
    p(f"{name}:")
    if CFG["stamp"]:
        p("s_memrealtime s[80:81]")
    p(f"s_cmp_ge_u32 s2, {nwg}", f"s_cbranch_scc1 L_{name}_end")
    for s, off in args:
        p(f"s_load_dwordx2 {sr(s, 2)}, s[0:1], {off}")
    if CFG["stamp"]:
        p(f"s_load_dwordx2 s[90:91], s[0:1], {ARG_WS}")
    p("v_lshrrev_b32 v1, 6, v0", f"v_readfirstlane_b32 {sr(S_WAVE)}, v1", "v_and_b32 v1, 63, v0")


def xstamp(p, k):
    if CFG["stamp"] and CFG.get("xs", 0):
        p("s_memrealtime s[60:61]", "s_waitcnt lgkmcnt(0)", f"s_mov_b32 s{56 + k}, s60")


def stamp(p, k):
    if CFG["stamp"]:
        p(f"s_memrealtime s[{80 + 2 * k}:{81 + 2 * k}]")
        p(f"s_memtime s[{70 + 2 * k}:{71 + 2 * k}]")


KID = [0]


def finish(p, name, kid, nwaves=4):
    kid = KID[0]
    KID[0] += 1
    if CFG["stamp"]:
        p("s_waitcnt vmcnt(0)", "s_memrealtime s[88:89]", "s_waitcnt lgkmcnt(0)")
        p(f"s_mul_i32 s70, s2, {nwaves}", f"s_add_u32 s70, s70, {sr(S_WAVE)}", "s_lshl_b32 s70, s70, 6",
          f"s_add_u32 s70, s70, {64 * MB + kid * 131072}", "s_add_u32 s90, s90, s70", "s_addc_u32 s91, s91, 0",
          "v_mov_b32 v2, s80", "v_mov_b32 v3, s82", "v_mov_b32 v4, s84", "v_mov_b32 v5, s86", "v_mov_b32 v6, s88",
          "s_sub_u32 s74, s74, s72", "v_mov_b32 v7, s74", "v_mov_b32 v1, 0", "s_mov_b64 exec, 1",
          "global_store_dwordx4 v1, v[2:5], s[90:91]", "global_store_dwordx2 v1, v[6:7], s[90:91] offset:16",
          "v_mov_b32 v8, s56", "v_mov_b32 v9, s57", "v_mov_b32 v10, s58", "v_mov_b32 v11, s59",
          "global_store_dwordx4 v1, v[8:11], s[90:91] offset:32")
    p(f"L_{name}_end:", "s_endpgm")


def xcd_map(p, a_bits, ma, nb_per):
    lm = ma.bit_length() - 1
    p("s_and_b32 s30, s2, 7", "s_lshr_b32 s31, s2, 3")
    if CFG.get("map_xor", 0):
        p(f"s_xor_b32 s31, s31, {CFG['map_xor']}")
    p(
      f"s_and_b32 {sr(S_MB)}, s30, {(1 << a_bits) - 1}", f"s_lshl_b32 {sr(S_MB)}, {sr(S_MB)}, {lm}",
      f"s_and_b32 s32, s31, {ma - 1}", f"s_add_u32 {sr(S_MB)}, {sr(S_MB)}, s32",
      f"s_lshr_b32 {sr(S_NB)}, s30, {a_bits}", f"s_mul_i32 {sr(S_NB)}, {sr(S_NB)}, {nb_per}",
      f"s_lshr_b32 s32, s31, {lm}", f"s_add_u32 {sr(S_NB)}, {sr(S_NB)}, s32")


def zero_acc(p, g):
    for r in range(g.ACC0, g.ACC0 + g.MT * g.NT * 4):
        p(f"v_mov_b32 v{r}, 0")


def rd128_bases(p, src0, dst0):
    p("v_lshrrev_b32 v28, 2, v1", "v_lshlrev_b32 v29, 7, v28", "v_and_b32 v30, 3, v1", "v_lshl_add_u32 v29, v30, 3, v29",
      "v_bfe_u32 v28, v28, 1, 2")
    for c in range(4):
        p(f"v_xor_b32 v30, {c}, v28", f"v_lshl_add_u32 {vr(src0 + c)}, v30, 5, v29", f"v_mov_b32 {vr(dst0 + c)}, {vr(src0 + c)}")


def dma128_col(p, dst):
    p("v_bfe_u32 v28, v1, 4, 2",
      "v_bfe_u32 v29, v1, 1, 2",
      "v_xor_b32 v28, v28, v29",
      "v_and_b32 v29, 1, v1", "v_lshlrev_b32 v29, 4, v29",
      f"v_lshl_add_u32 {vr(dst)}, v28, 5, v29")


def sum_g(p, v, t):
    p(f"v_mov_b32 {vr(t)}, {vr(v)}", f"v_permlane16_swap_b32 {vr(t)}, {vr(v)}", f"v_add_f32 {vr(v)}, {vr(v)}, {vr(t)}",
      f"v_mov_b32 {vr(t)}, {vr(v)}", f"v_permlane32_swap_b32 {vr(t)}, {vr(v)}", f"v_add_f32 {vr(v)}, {vr(v)}, {vr(t)}")


def k0():
    name = "ln1_kernel"
    p = Prog()
    entry(p, name, 256, [(40, ARG_X), (42, ARG_WO), (44, ARG_WS), (46, ARG_WQKV)])
    p("v_and_b32 v2, 15, v1", "v_lshrrev_b32 v3, 4, v1",
      "v_lshlrev_b32 v4, 11, v2", "v_lshl_add_u32 v4, v3, 4, v4")
    p("s_waitcnt lgkmcnt(0)")
    p("s_cmp_lt_u32 s2, 128", "s_cselect_b32 s4, s40, s42", "s_cselect_b32 s5, s41, s43",
      "s_cselect_b32 s6, 4, 2", "s_lshl_b32 s6, s6, 20", "s_mov_b32 s7, 0x20000")
    srd(p, 8, 44, WS_XN, 4 * MB)
    srd(p, 12, 44, WS_SM, SM_SIZE)
    srd(p, 16, 46, 0, 6 * MB)
    p("s_and_b32 s21, s2, 127", "s_lshl_b32 s24, s21, 15", f"s_lshl_b32 s25, {sr(S_WAVE)}, 9", "s_add_u32 s24, s24, s25")
    p("s_cmp_ge_u32 s2, 192", f"s_cbranch_scc1 L_{name}_pf")
    for i in range(8):
        p(f"buffer_load_dwordx4 {vr(8 + 4 * i, 4)}, v4, s[4:7], s24 offen offset:{64 * i}")
    p(f"L_{name}_pf:")
    p("s_lshr_b32 s26, s2, 3", "s_mul_i32 s26, s26, 384", f"s_mul_i32 s27, {sr(S_WAVE)}, 96", "s_add_u32 s26, s26, s27",
      "s_and_b32 s27, s2, 7", "s_lshr_b32 s27, s27, 1", "s_lshl_b32 s27, s27, 9", "s_mov_b32 s28, 0x5556")
    for i in range(2):
        p(f"v_add_u32 v5, s26, v1" if i == 0 else "v_add_u32 v5, 64, v5")
        p("v_lshrrev_b32 v6, 2, v5",
          "v_lshlrev_b32 v6, 11, v6", "v_and_b32 v7, 3, v5", "v_lshl_add_u32 v6, v7, 7, v6")
        if i == 1:
            p("s_mov_b32 exec_hi, 0")
        p(f"buffer_load_dword v{72 + i}, v6, s[16:19], s27 offen")
    p("s_mov_b64 exec, -1")
    stamp(p, 1)
    stamp(p, 2)
    p("s_cmp_ge_u32 s2, 192", f"s_cbranch_scc1 L_{name}_fin")
    for i in range(8):
        p(f"s_waitcnt vmcnt({9 - i})")
        for d in range(4):
            s_, o = 8 + 4 * i + d, 80 + 8 * i + 2 * d
            p(f"v_lshlrev_b32 v{o}, 16, v{s_}", f"v_and_b32 v{o + 1}, 0xffff0000, v{s_}")
    def reduce_all(src_pairs, lds_off):
        p("v_add_f32 v6, v6, v7")
        sum_g(p, 6, 7)
        p(f"v_lshlrev_b32 v5, 4, v2", f"s_lshl_b32 s26, {sr(S_WAVE)}, 2", "v_add_u32 v7, s26, v5",
          f"ds_write_b32 v7, v6 offset:{lds_off}", "s_waitcnt lgkmcnt(0)", "s_barrier",
          f"ds_read_b128 v[76:79], v5 offset:{lds_off}", "s_waitcnt lgkmcnt(0)",
          "v_add_f32 v76, v76, v77", "v_add_f32 v78, v78, v79", "v_add_f32 v6, v76, v78")
    p("v_pk_add_f32 v[6:7], v[80:81], v[82:83]")
    for i in range(2, 32):
        p(f"v_pk_add_f32 v[6:7], v[6:7], {vr(80 + 2 * i, 2)}")
    reduce_all(None, 0)
    p("v_mul_f32 v74, 0x3a800000, v6")
    p("s_cmp_ge_u32 s2, 128", f"s_cbranch_scc1 L_{name}_wo")
    p("v_mov_b32 v75, v74")
    for i in range(32):
        p(f"v_pk_add_f32 {vr(80 + 2 * i, 2)}, {vr(80 + 2 * i, 2)}, v[74:75] neg_lo:[0,1] neg_hi:[0,1]")
    p("v_pk_mul_f32 v[6:7], v[80:81], v[80:81]")
    for i in range(1, 32):
        p(f"v_pk_fma_f32 v[6:7], {vr(80 + 2 * i, 2)}, {vr(80 + 2 * i, 2)}, v[6:7]")
    reduce_all(None, 256)
    p("v_mov_b32 v7, 0x3727c5ac", "v_fmac_f32 v7, 0x3a800000, v6", "v_rsq_f32 v6, v7", "s_nop 0", "v_mov_b32 v7, v6")
    p("v_lshlrev_b32 v5, 4, v1", f"s_lshl_b32 s24, {sr(S_WAVE)}, 20", "s_lshl_b32 s25, s21, 10", "s_add_u32 s24, s24, s25")
    for i in range(8):
        for d in range(4):
            o = 80 + 8 * i + 2 * d
            p(f"v_pk_mul_f32 {vr(o, 2)}, {vr(o, 2)}, v[6:7]")
        for d in range(4):
            o = 80 + 8 * i + 2 * d
            p(f"v_cvt_pk_bf16_f32 v{8 + 4 * i + d}, v{o}, v{o + 1}")
        p(f"buffer_store_dwordx4 {vr(8 + 4 * i, 4)}, v5, s[8:11], s24 offen" + stf(0), "s_add_u32 s24, s24, 131072")
    p(f"s_cmp_lg_u32 {sr(S_WAVE)}, 0", f"s_cbranch_scc1 L_{name}_fin")
    p("v_lshlrev_b32 v5, 2, v1", "s_mov_b64 exec, 0xffff", "s_lshl_b32 s24, s21, 6",
      f"buffer_store_dword v74, v5, s[12:15], s24 offen offset:{SM_MEANX}",
      f"s_branch L_{name}_fin")
    p(f"L_{name}_wo:")
    p(f"s_cmp_lg_u32 {sr(S_WAVE)}, 0", f"s_cbranch_scc1 L_{name}_fin")
    p("v_cvt_pk_bf16_f32 v8, v74, v74", "v_lshlrev_b32 v9, 16, v8", "v_sub_f32 v9, v74, v9", "v_cvt_pk_bf16_f32 v9, v9, v9",
      "v_cmp_eq_u32 vcc, 1, v3", "v_cndmask_b32 v8, v8, v9, vcc",
      "v_lshrrev_b32 v5, 2, v2", "v_lshlrev_b32 v5, 4, v5", "v_and_b32 v6, 3, v2", "v_lshl_add_u32 v5, v6, 1, v5",
      "v_lshl_add_u32 v5, v3, 6, v5", "s_mov_b32 exec_hi, 0",
      "s_lshr_b32 s24, s21, 1", "s_lshl_b32 s24, s24, 7", "s_and_b32 s25, s21, 1", "s_lshl_b32 s25, s25, 3",
      "s_add_u32 s24, s24, s25", f"s_add_u32 s24, s24, {SM_WB}",
      "buffer_store_short v8, v5, s[12:15], s24 offen")
    p(f"L_{name}_fin:")
    finish(p, name, 0)
    return name, p, (144, 0), (256, 256, 512)


def k1():
    name = "qkv_kernel"
    p = Prog()
    S, STAGE = CFG.get("k1_S", 5), 24576
    SRC, D0, D1 = 10, 14, 18
    g = Gemm(name="k1", MT=2, NT=12, KS=2, KT=16, U=CFG.get("k1_U", 2), S=S, STAGE=STAGE, D=7, a_mode="direct", AR=CFG.get("k1_AR", 4),
             ACC0=32, vA=9, w_step=64 * 6144, a_step=131072,
             dma=[(2 + j, S_SRDW, S_W, 0 if j < 4 else 4096, (j % 4) * 1024) for j in range(6)],
             rd=lambda ks, nt, par: ("tr", [((D0, D1)[par] + nt % 4, (nt // 4) * 8192 + (32 * ks + 16 * u) * 128) for u in range(2)]),
             rd_bases=lambda par: [((D0, D1)[par] + c, SRC + c) for c in range(4)],
             swap=lambda nt: nt >= 8, wait_stride=CFG.get("k1_ws", 2))
    entry(p, name, 256, [(40, ARG_WQKV), (44, ARG_WS)])
    xcd_map(p, 1, 8, 4)
    dma128_col(p, 27)
    p(f"s_lshl_b32 s33, {sr(S_NB)}, 7", "v_add_u32 v27, s33, v27", "s_mov_b32 s34, 6144")
    for j in range(6):
        p(f"s_mul_i32 s30, {sr(S_WAVE)}, 6", f"s_add_u32 s30, s30, {j}", "s_lshr_b32 s31, s30, 3", "s_and_b32 s30, s30, 7",
          "s_lshl_b32 s30, s30, 3", "s_lshl_b32 s31, s31, 11",
          "v_lshrrev_b32 v28, 3, v1", "v_add_u32 v28, s30, v28",
          "v_and_b32 v29, 0x23, v28", "v_bfe_u32 v30, v28, 2, 2", "v_lshl_add_u32 v29, v30, 3, v29",
          "v_bfe_u32 v30, v28, 4, 1", "v_lshl_add_u32 v29, v30, 2, v29",
          "v_mul_lo_u32 v29, s34, v29", f"s_sub_u32 s31, s31, {(j % 4) * 1024}",
          f"v_add3_u32 v{2 + j}, v29, v27, s31")
    p("v_lshlrev_b32 v9, 4, v1")
    p("s_waitcnt lgkmcnt(0)")
    xstamp(p, 0)
    srd(p, S_SRDW, 40, 0, 6 * MB)
    srd(p, S_SRDA, 44, WS_XN, 4 * MB)
    p(f"s_mov_b32 {sr(S_W)}, 0", f"s_lshl_b32 {sr(S_A)}, {sr(S_MB)}, 13", f"s_lshl_b32 s30, {sr(S_WAVE)}, 11",
      f"s_add_u32 {sr(S_A)}, {sr(S_A)}, s30", f"s_mul_i32 {sr(S_M)}, {sr(S_WAVE)}, 6144",
      f"s_add_u32 {sr(S_MEND)}, {sr(S_M)}, {S * STAGE}", f"s_mov_b32 {sr(S_R)}, 0")
    xstamp(p, 1)
    g.emit_start(p)
    xstamp(p, 2)
    g.after_bar = lambda: xstamp(p, 3)
    rd128_bases(p, SRC, D0)
    zero_acc(p, g)
    srd(p, 12, 44, WS_Q, 12 * MB)
    stamp(p, 1)
    g.dbg = CFG.get("dbg", 0)
    g.zigzag = CFG.get("zz", 1)
    g.emit_main(p)
    stamp(p, 2)
    p("v_and_b32 v2, 15, v1", "v_lshrrev_b32 v3, 4, v1", "v_lshlrev_b32 v4, 9, v3",
      "v_lshl_add_u32 v5, v2, 4, v4",
      "v_and_b32 v6, 7, v2", "v_lshl_add_u32 v6, v6, 4, v4", "v_lshrrev_b32 v7, 3, v2", "v_lshl_add_u32 v6, v7, 8, v6",
      f"s_lshl_b32 s30, {sr(S_NB)}, 18", f"s_lshl_b32 s31, {sr(S_MB)}, 13", "s_add_u32 s30, s30, s31",
      f"s_lshl_b32 s31, {sr(S_WAVE)}, 11", "s_add_u32 s30, s30, s31",
      "s_mov_b32 s36, 0x3e8293ee", "s_mov_b32 s37, 0x3e8293ee")
    T = 8
    tq = 0
    def tmp():
        nonlocal tq
        tq = (tq + 1) % 5
        return 12 + 4 * tq
    for hh in range(2):
        for sub in range(3):
            p(f"s_add_u32 s31, s30, {hh * 131072 + sub * 4 * MB}")
            for x in range(2):
                t = tmp()
                if sub < 2:
                    r0, r1 = g.acc(sub * 4 + 2 * hh, x), g.acc(sub * 4 + 2 * hh + 1, x)
                else:
                    r0, r1 = g.acc(8 + 2 * hh + x, 0), g.acc(8 + 2 * hh + x, 1)
                if sub == 0:
                    for r in (r0, r0 + 2, r1, r1 + 2):
                        p(f"v_pk_mul_f32 {vr(r, 2)}, {vr(r, 2)}, s[36:37]")
                for d, r in enumerate((r0, r0 + 2, r1, r1 + 2)):
                    p(f"v_cvt_pk_bf16_f32 v{t + d}, v{r}, v{r + 1}")
                va, off = (6, x * 128) if sub == 1 else (5, x * 256)
                p(f"buffer_store_dwordx4 {vr(t, 4)}, v{va}, s[12:15], s31 offen offset:{off}" + stf(1))
    finish(p, name, 1)
    return name, p, (32 + 96, g.nagpr), (256, 256, S * STAGE)


def k35(which):
    name = {3: "oproj_kernel", 5: "down_kernel"}[which]
    p = Prog()
    S, STAGE = CFG.get(f"k{which}_S", 5), 16384
    SRC, D0, D1 = 10, 14, 18
    X0, X1 = 22, 23
    WBOFF = S * STAGE
    NT = 5 if which == 3 else 4
    def rd(ks, nt, par):
        if nt == 4:
            return ("b128", (X0, X1)[par], ks * 128)
        return ("tr", [((D0, D1)[par] + nt, (32 * ks + 16 * u) * 128) for u in range(2)])
    g = Gemm(name=f"k{which}", MT=2, NT=NT, KS=4, KT=8 if which == 3 else 28, U=CFG.get(f"k{which}_U", 2), S=S, STAGE=STAGE, D=7, a_mode="direct", AR=CFG.get(f"k{which}_AR", 8),
             ACC0=64, vA=9, w_step=128 * 2048, a_step=131072,
             dma=[(2 + j, S_SRDW, S_W, 0, j * 1024) for j in range(4)],
             rd=rd, rd_bases=lambda par: [((D0, D1)[par] + c, SRC + c) for c in range(4)], wait_stride=CFG.get("k35_ws", 2))
    if which == 3:
        g.extra_adv = lambda par: [f"v_add_u32 v{(X0, X1)[par]}, 512, v{(X1, X0)[par]}"]
    entry(p, name, 256, [(40, ARG_WO if which == 3 else ARG_WD), (44, ARG_WS), (46, ARG_X if which == 3 else ARG_OUT)])
    xcd_map(p, 2, 4, 8)
    dma128_col(p, 27)
    p(f"s_lshl_b32 s33, {sr(S_NB)}, 7", f"s_lshl_b32 s30, {sr(S_WAVE)}, 16", "s_add_u32 s33, s33, s30",
      "v_lshrrev_b32 v28, 3, v1", "v_lshl_add_u32 v27, v28, 11, v27", "v_add_u32 v2, s33, v27")
    for j in range(1, 4):
        p(f"v_add_u32 v{2 + j}, {j * (8 * 2048 - 1024)}, v2")
    p("v_lshlrev_b32 v9, 4, v1")
    p("s_waitcnt lgkmcnt(0)")
    xstamp(p, 0)
    srd(p, S_SRDW, 40, 0, 2 * MB if which == 3 else 3584 * 2048)
    srd(p, S_SRDA, 44, WS_O if which == 3 else WS_ACT, 4 * MB if which == 3 else ACT_SIZE)
    srd(p, 12, 44, WS_SM, SM_SIZE)
    p(f"s_mov_b32 {sr(S_W)}, 0", f"s_lshl_b32 {sr(S_A)}, {sr(S_MB)}, 13", f"s_lshl_b32 s30, {sr(S_WAVE)}, 11",
      f"s_add_u32 {sr(S_A)}, {sr(S_A)}, s30", f"s_mov_b32 s38, {sr(S_A)}", f"s_lshl_b32 {sr(S_M)}, {sr(S_WAVE)}, 12",
      f"s_add_u32 {sr(S_MEND)}, {sr(S_M)}, {S * STAGE}", f"s_mov_b32 {sr(S_R)}, 0")
    if which == 3:
        p(f"s_lshl_b32 s30, {sr(S_WAVE)}, 10", f"s_add_u32 m0, s30, {WBOFF}", f"s_add_u32 s30, s30, {SM_WB}",
          "buffer_load_dwordx4 v9, s[12:15], s30 offen lds")
    xstamp(p, 1)
    g.emit_start(p)
    xstamp(p, 2)
    g.after_bar = lambda: xstamp(p, 3)
    srd(p, 16, 46, 0, 4 * MB)
    srd(p, 48, 44, WS_HC, 4 * MB)
    p(f"s_lshl_b32 s39, {sr(S_MB)}, 7", f"s_lshl_b32 s30, {sr(S_WAVE)}, 5", "s_add_u32 s39, s39, s30",
      "v_and_b32 v24, 15, v1", "v_lshrrev_b32 v25, 4, v1", "v_lshlrev_b32 v26, 2, v24",
      "s_lshl_b32 s35, s39, 2")
    if which == 3:
        p("v_lshlrev_b32 v27, 11, v24", "v_lshl_add_u32 v27, v25, 3, v27",
          "s_lshl_b32 s36, s39, 11", f"s_lshl_b32 s30, {sr(S_NB)}, 7", "s_add_u32 s36, s36, s30", "s_add_u32 s37, s36, 32768")
        g.more_vm(p, [f"buffer_load_dwordx2 {vr(32 + 8 * mt + 2 * t, 2)}, v27, s[16:19], s{36 + mt} offen offset:{32 * t}"
                      for mt in range(2) for t in range(4)])
        g.more_vm(p, [f"buffer_load_dword v{48 + mt}, v26, s[12:15], s35 offen offset:{SM_MEANX + 64 * mt}" for mt in range(2)])
        p("v_and_b32 v28, 1, v1", "v_lshlrev_b32 v28, 6, v28", f"v_lshl_add_u32 v{X0}, v25, 4, v28", f"v_add_u32 v{X0}, {WBOFF}, v{X0}")
    else:
        p(f"s_lshl_b32 s36, {sr(S_NB)}, 18", "s_add_u32 s36, s36, s38", "s_add_u32 s37, s36, 131072",
          f"s_add_u32 s34, s35, {SM_MEANH}", "v_lshl_add_u32 v27, v25, 15, v26")
        g.more_vm(p, [f"buffer_load_dwordx4 {vr(32 + 8 * mt + 4 * kb, 4)}, v9, s[48:51], s{36 + kb} offen offset:{1024 * mt}"
                      for mt in range(2) for kb in range(2)])
        g.more_vm(p, [f"buffer_load_dword v{48 + mt}, v26, s[12:15], s34 offen offset:{64 * mt}" for mt in range(2)])
        for i in range(4):
            p(f"s_add_u32 s34, s35, {SM_SSQ + i * 8192}")
            g.more_vm(p, [f"buffer_load_dword v{50 + 4 * mt + i}, v27, s[12:15], s34 offen offset:{64 * mt}" for mt in range(2)])
    rd128_bases(p, SRC, D0)
    zero_acc(p, g)
    stamp(p, 1)
    g.dbg = CFG.get("dbg", 0)
    g.zigzag = CFG.get("zz", 1)
    g.emit_main(p)
    stamp(p, 2)
    if which == 3:
        p(f"s_lshl_b32 s36, {sr(S_NB)}, 18", "s_add_u32 s36, s36, s38", "s_add_u32 s37, s36, 131072",
          f"s_lshl_b32 s30, {sr(S_NB)}, 13", "s_add_u32 s30, s30, s35", f"s_add_u32 s30, s30, {SM_SSQ}",
          f"s_add_u32 s31, s35, {SM_MEANH}")
        for mt in range(2):
            e = g.acc(4, mt)
            m = 48 + mt
            p(f"v_add_f32 v{e}, v{e}, v{e + 1}", f"v_add_f32 v{m}, v{m}, v{e}")
            p(f"v_mov_b32 v2, 0", "v_mov_b32 v3, 0")
            for t in range(4):
                a = g.acc(t, mt)
                x = 32 + 8 * mt + 2 * t
                for d in range(2):
                    p(f"v_lshlrev_b32 v4, 16, v{x + d}", f"v_and_b32 v5, 0xffff0000, v{x + d}",
                      f"v_sub_f32 v4, v4, v{m}", f"v_sub_f32 v5, v5, v{m}",
                      f"v_pk_add_f32 {vr(a + 2 * d, 2)}, {vr(a + 2 * d, 2)}, v[4:5]",
                      f"v_pk_fma_f32 v[2:3], {vr(a + 2 * d, 2)}, {vr(a + 2 * d, 2)}, v[2:3]",
                      f"v_cvt_pk_bf16_f32 v{x + d}, v{a + 2 * d}, v{a + 2 * d + 1}")
                if t % 2 == 1:
                    p(f"buffer_store_dwordx4 {vr(x - 2, 4)}, v9, s[48:51], s{36 + t // 2} offen offset:{1024 * mt}" + stf(3))
            p("v_add_f32 v2, v2, v3")
            sum_g(p, 2, 3)
            p(f"v_mov_b32 v{6 + mt}, v2")
        p("s_mov_b64 exec, 0xffff")
        for mt in range(2):
            p(f"buffer_store_dword v{6 + mt}, v26, s[12:15], s30 offen offset:{64 * mt}")
        p(f"s_cmp_lg_u32 {sr(S_NB)}, 0", f"s_cbranch_scc1 L_{name}_fin")
        for mt in range(2):
            p(f"buffer_store_dword v{48 + mt}, v26, s[12:15], s31 offen offset:{64 * mt}")
        p(f"L_{name}_fin:")
    else:
        p("v_lshlrev_b32 v27, 11, v24", "v_and_b32 v28, 1, v25", "v_lshl_add_u32 v27, v28, 5, v27",
          "v_lshrrev_b32 v28, 1, v25", "v_lshl_add_u32 v27, v28, 4, v27",
          "s_lshl_b32 s36, s39, 11", f"s_lshl_b32 s30, {sr(S_NB)}, 7", "s_add_u32 s36, s36, s30", "s_add_u32 s37, s36, 32768")
        for mt in range(2):
            q = 50 + 4 * mt
            m = 48 + mt
            p(f"v_add_f32 v{q}, v{q}, v{q + 1}", f"v_add_f32 v{q + 2}, v{q + 2}, v{q + 3}", f"v_add_f32 v2, v{q}, v{q + 2}")
            sum_g(p, 2, 3)
            p("v_mov_b32 v3, 0x3727c5ac", "v_fmac_f32 v3, 0x3a800000, v2", "v_rcp_f32 v2, v3", "s_nop 0", "v_mov_b32 v3, v2")
            for t in range(4):
                a = g.acc(t, mt)
                x = 32 + 8 * mt + 2 * t
                for d in range(2):
                    p(f"v_lshlrev_b32 v4, 16, v{x + d}", f"v_and_b32 v5, 0xffff0000, v{x + d}",
                      f"v_add_f32 v4, v4, v{m}", f"v_add_f32 v5, v5, v{m}",
                      f"v_pk_fma_f32 v[4:5], {vr(a + 2 * d, 2)}, v[2:3], v[4:5]",
                      f"v_cvt_pk_bf16_f32 v{x + d}, v4, v5")
                if t % 2 == 1:
                    p(f"v_permlane16_swap_b32 v{x - 2}, v{x}", f"v_permlane16_swap_b32 v{x - 1}, v{x + 1}",
                      f"buffer_store_dwordx4 {vr(x - 2, 4)}, v27, s[16:19], s{36 + mt} offen offset:{64 * (t // 2)}" + stf(5))
    finish(p, name, which)
    return name, p, (64 + NT * 2 * 4, g.nagpr), (256, 256, S * STAGE + (4096 if which == 3 else 0))


def k4():
    name = "glu_kernel"
    p = Prog()
    S, STAGE = CFG.get("k4_S", 5), 28672
    SRC, D0, D1 = 10, 11, 12
    g = Gemm(name="k4", MT=4, NT=14, KS=2, KT=16, U=CFG.get("k4_U", 2), S=S, STAGE=STAGE, D=CFG.get("k4_D", 3), a_mode="direct",
             AR=CFG.get("k4_AR", 4), ACC0=32, vA=9, w_step=64 * 7168, a_step=131072,
             dma=[(2 + j, S_SRDW, S_W, 0 if j < 4 else 4096, (j % 4) * 1024) for j in range(7)],
             rd=lambda ks, nt, par: ("tr", [((D0, D1)[par], (nt // 7) * 14336 + (32 * ks + 16 * u) * 224 + (nt % 7) * 32) for u in range(2)]),
             rd_bases=lambda par: [((D0, D1)[par], SRC)])
    entry(p, name, 256, [(40, ARG_WG), (42, ARG_WU), (44, ARG_WS)])
    xcd_map(p, 1, 4, 8)
    assert all((e * 4682) >> 16 == e // 14 for e in range(896))
    p(f"s_and_b32 s30, {sr(S_WAVE)}, 1", "s_mul_i32 s30, s30, 448", f"s_and_b32 s33, {sr(S_NB)}, 1", "s_lshl_b32 s33, s33, 1",
      f"s_mul_i32 s35, {sr(S_NB)}, 224", "s_movk_i32 s34, 7168", "v_add_u32 v27, s30, v1")
    for j in range(7):
        p(f"v_add_u32 v28, {64 * j}, v27" if j else "v_mov_b32 v28, v27",
          "v_mul_u32_u24 v29, 4682, v28", "v_lshrrev_b32 v29, 16, v29",
          "v_mul_u32_u24 v30, 14, v29", "v_sub_u32 v30, v28, v30", "v_add_u32 v30, s33, v30",
          "v_subrev_u32 v31, 14, v30", "v_min_u32 v30, v30, v31",
          "v_mul_lo_u32 v29, s34, v29", "v_lshl_add_u32 v29, v30, 4, v29",
          f"s_sub_u32 s31, s35, {(j % 4) * 1024}", f"v_add_u32 v{2 + j}, s31, v29")
    p("v_lshlrev_b32 v9, 4, v1")
    p("s_waitcnt lgkmcnt(0)")
    xstamp(p, 0)
    p(f"s_cmp_lt_u32 {sr(S_WAVE)}, 2", "s_cselect_b32 s4, s40, s42", "s_cselect_b32 s5, s41, s43",
      f"s_mov_b32 s6, {1024 * 7168}", "s_mov_b32 s7, 0x20000")
    srd(p, S_SRDA, 44, WS_HC, 4 * MB)
    p(f"s_mov_b32 {sr(S_W)}, 0", f"s_lshl_b32 {sr(S_A)}, {sr(S_MB)}, 14", f"s_lshl_b32 s30, {sr(S_WAVE)}, 12",
      f"s_add_u32 {sr(S_A)}, {sr(S_A)}, s30", f"s_mov_b32 s38, {sr(S_A)}", f"s_mul_i32 {sr(S_M)}, {sr(S_WAVE)}, 7168",
      f"s_add_u32 {sr(S_MEND)}, {sr(S_M)}, {S * STAGE}", f"s_mov_b32 {sr(S_R)}, 0")
    xstamp(p, 1)
    g.emit_start(p)
    xstamp(p, 2)
    g.after_bar = lambda: xstamp(p, 3)
    p("v_lshrrev_b32 v28, 2, v1", "v_mul_u32_u24 v28, 224, v28", "v_and_b32 v29, 3, v1", f"v_lshl_add_u32 v{SRC}, v29, 3, v28",
      f"v_mov_b32 v{D0}, v{SRC}")
    zero_acc(p, g)
    srd(p, 12, 44, WS_ACT, ACT_SIZE)
    stamp(p, 1)
    g.dbg = CFG.get("dbg", 0)
    g.zigzag = CFG.get("zz", 1)
    g.emit_main(p)
    stamp(p, 2)
    p(f"s_lshr_b32 s30, {sr(S_NB)}, 1", "s_mul_i32 s30, s30, 7", f"s_and_b32 s31, {sr(S_NB)}, 1",
      "s_add_u32 s32, s30, 3", "s_lshl_b32 s32, s32, 17", "s_add_u32 s32, s32, s38", "s_lshl_b32 s33, s31, 3", "s_add_u32 s32, s32, s33",
      "s_lshl_b32 s31, s31, 2", "s_add_u32 s30, s30, s31", "s_lshl_b32 s30, s30, 17", "s_add_u32 s30, s30, s38")
    tq = 0
    for pr in range(4):
        for mt in range(4):
            t = 12 + 4 * tq
            tq = (tq + 1) % 5
            tiles = (2 * pr, 2 * pr + 1) if pr < 3 else (6,)
            for i, nt in enumerate(tiles):
                a, b = g.acc(nt, mt), g.acc(nt + 7, mt)
                p(f"v_pk_mul_f32 {vr(a, 2)}, {vr(a, 2)}, {vr(b, 2)}", f"v_pk_mul_f32 {vr(a + 2, 2)}, {vr(a + 2, 2)}, {vr(b + 2, 2)}")
            for i, nt in enumerate(tiles):
                a = g.acc(nt, mt)
                p(f"v_cvt_pk_bf16_f32 v{t + 2 * i}, v{a}, v{a + 1}", f"v_cvt_pk_bf16_f32 v{t + 2 * i + 1}, v{a + 2}, v{a + 3}")
            if pr < 3:
                p(f"buffer_store_dwordx4 {vr(t, 4)}, v9, s[12:15], s30 offen offset:{1024 * mt}" + stf(4))
            else:
                p(f"buffer_store_dwordx2 {vr(t, 2)}, v9, s[12:15], s32 offen offset:{1024 * mt}" + stf(4))
        if pr < 2:
            p("s_add_u32 s30, s30, 131072")
    finish(p, name, 4)
    return name, p, (256, g.nagpr), (256, 256, S * STAGE)


from attn import k2


def build(kernels=None):
    KID[0] = 0
    ks = [k0(), k1(), k2(CFG, entry, finish, stamp, srd), k35(3), k4(), k35(5)]
    if kernels is not None:
        ks = [k for i, k in enumerate(ks) if i in kernels]
    head = open(f"cdna_kernels/{NAME}.s.ref").read().split("; Override launch")[0]
    out = head
    out += "; Generated by a script (software-pipelined MFMA kernels); one launch per phase.\n"
    for name, p, regs, (grid, blk, lds) in ks:
        out += f"; @launch kernel={name} grid=({grid},1,1) block=({blk},1,1) lds={lds}\n"
    out += '.amdgcn_target "amdgcn-amd-amdhsa--gfx950"\n'
    for name, p, regs, _ in ks:
        out += kernel_header(name) + p.text()
    for name, p, regs, _ in ks:
        out += kernel_desc(name, regs[0], regs[1])
    return out


if __name__ == "__main__":
    dst = f"cdna_kernels/{NAME}.s"
    for a in sys.argv[1:]:
        if "=" in a:
            k, v = a.split("=")
            if k == "out":
                dst = v
            else:
                CFG[k] = int(v)
    open(dst, "w").write(build())
    print("wrote", dst)
```

```python
import sys
from asmlib import *
from gemm import *

NAME = "sequential_preLN__softmax_full_mha__glu_gated_bilinear__prompt"
MB = 1 << 20
WS_XN, WS_Q, WS_K, WS_V, WS_O, WS_HC, WS_ACT = 0, 4 * MB, 8 * MB, 12 * MB, 16 * MB, 20 * MB, 24 * MB
WS_SM = 40 * MB
SM_MEANX, SM_MEANH, SM_WB, SM_SSQ = 0, 8192, 16384, 32768
SM_SIZE = 32768 + 16 * 8192
ACT_SIZE = 112 * 128 * 1024
ARG_X, ARG_WQKV, ARG_WO, ARG_WG, ARG_WU, ARG_WD, ARG_OUT, ARG_DBG, ARG_WS = 0, 8, 16, 32, 40, 48, 56, 64, 72
CFG = dict(stamp=False)


def stf(k):
    return {0: "", 1: " sc1", 2: " nt", 3: " sc0 sc1"}[CFG.get(f"k{k}_st", 1)]


def srd(p, d, ptr, off, size):
    if off:
        p(f"s_add_u32 {sr(d)}, {sr(ptr)}, {off}", f"s_addc_u32 {sr(d + 1)}, {sr(ptr + 1)}, 0")
    else:
        p(f"s_mov_b32 {sr(d)}, {sr(ptr)}", f"s_mov_b32 {sr(d + 1)}, {sr(ptr + 1)}")
    p(f"s_mov_b32 {sr(d + 2)}, {size}", f"s_mov_b32 {sr(d + 3)}, 0x20000")


def entry(p, name, nwg, args):
    p(f"{name}:")
    if CFG["stamp"]:
        p("s_memrealtime s[80:81]")
    p(f"s_cmp_ge_u32 s2, {nwg}", f"s_cbranch_scc1 L_{name}_end")
    for s, off in args:
        p(f"s_load_dwordx2 {sr(s, 2)}, s[0:1], {off}")
    if CFG["stamp"]:
        p(f"s_load_dwordx2 s[90:91], s[0:1], {ARG_WS}")
    p("v_lshrrev_b32 v1, 6, v0", f"v_readfirstlane_b32 {sr(S_WAVE)}, v1", "v_and_b32 v1, 63, v0")


def xstamp(p, k):
    if CFG["stamp"] and CFG.get("xs", 0):
        p("s_memrealtime s[60:61]", "s_waitcnt lgkmcnt(0)", f"s_mov_b32 s{56 + k}, s60")


def stamp(p, k):
    if CFG["stamp"]:
        p(f"s_memrealtime s[{80 + 2 * k}:{81 + 2 * k}]")
        p(f"s_memtime s[{70 + 2 * k}:{71 + 2 * k}]")


KID = [0]


def finish(p, name, kid, nwaves=4):
    kid = KID[0]
    KID[0] += 1
    if CFG["stamp"]:
        p("s_waitcnt vmcnt(0)", "s_memrealtime s[88:89]", "s_waitcnt lgkmcnt(0)")
        p(f"s_mul_i32 s70, s2, {nwaves}", f"s_add_u32 s70, s70, {sr(S_WAVE)}", "s_lshl_b32 s70, s70, 6",
          f"s_add_u32 s70, s70, {64 * MB + kid * 131072}", "s_add_u32 s90, s90, s70", "s_addc_u32 s91, s91, 0",
          "v_mov_b32 v2, s80", "v_mov_b32 v3, s82", "v_mov_b32 v4, s84", "v_mov_b32 v5, s86", "v_mov_b32 v6, s88",
          "s_sub_u32 s74, s74, s72", "v_mov_b32 v7, s74", "v_mov_b32 v1, 0", "s_mov_b64 exec, 1",
          "global_store_dwordx4 v1, v[2:5], s[90:91]", "global_store_dwordx2 v1, v[6:7], s[90:91] offset:16",
          "v_mov_b32 v8, s56", "v_mov_b32 v9, s57", "v_mov_b32 v10, s58", "v_mov_b32 v11, s59",
          "global_store_dwordx4 v1, v[8:11], s[90:91] offset:32")
    p(f"L_{name}_end:", "s_endpgm")


def xcd_map(p, a_bits, ma, nb_per):
    lm = ma.bit_length() - 1
    p("s_and_b32 s30, s2, 7", "s_lshr_b32 s31, s2, 3")
    if CFG.get("map_xor", 0):
        p(f"s_xor_b32 s31, s31, {CFG['map_xor']}")
    p(
      f"s_and_b32 {sr(S_MB)}, s30, {(1 << a_bits) - 1}", f"s_lshl_b32 {sr(S_MB)}, {sr(S_MB)}, {lm}",
      f"s_and_b32 s32, s31, {ma - 1}", f"s_add_u32 {sr(S_MB)}, {sr(S_MB)}, s32",
      f"s_lshr_b32 {sr(S_NB)}, s30, {a_bits}", f"s_mul_i32 {sr(S_NB)}, {sr(S_NB)}, {nb_per}",
      f"s_lshr_b32 s32, s31, {lm}", f"s_add_u32 {sr(S_NB)}, {sr(S_NB)}, s32")


def zero_acc(p, g):
    for r in range(g.ACC0, g.ACC0 + g.MT * g.NT * 4):
        p(f"v_mov_b32 v{r}, 0")


def rd128_bases(p, src0, dst0):
    p("v_lshrrev_b32 v28, 2, v1", "v_lshlrev_b32 v29, 7, v28", "v_and_b32 v30, 3, v1", "v_lshl_add_u32 v29, v30, 3, v29",
      "v_bfe_u32 v28, v28, 1, 2")
    for c in range(4):
        p(f"v_xor_b32 v30, {c}, v28", f"v_lshl_add_u32 {vr(src0 + c)}, v30, 5, v29", f"v_mov_b32 {vr(dst0 + c)}, {vr(src0 + c)}")


def dma128_col(p, dst):
    p("v_bfe_u32 v28, v1, 4, 2",
      "v_bfe_u32 v29, v1, 1, 2",
      "v_xor_b32 v28, v28, v29",
      "v_and_b32 v29, 1, v1", "v_lshlrev_b32 v29, 4, v29",
      f"v_lshl_add_u32 {vr(dst)}, v28, 5, v29")


def sum_g(p, v, t):
    p(f"v_mov_b32 {vr(t)}, {vr(v)}", f"v_permlane16_swap_b32 {vr(t)}, {vr(v)}", f"v_add_f32 {vr(v)}, {vr(v)}, {vr(t)}",
      f"v_mov_b32 {vr(t)}, {vr(v)}", f"v_permlane32_swap_b32 {vr(t)}, {vr(v)}", f"v_add_f32 {vr(v)}, {vr(v)}, {vr(t)}")


def k0():
    name = "ln1_kernel"
    p = Prog()
    entry(p, name, 256, [(40, ARG_X), (42, ARG_WO), (44, ARG_WS), (46, ARG_WQKV)])
    p("v_and_b32 v2, 15, v1", "v_lshrrev_b32 v3, 4, v1",
      "v_lshlrev_b32 v4, 11, v2", "v_lshl_add_u32 v4, v3, 4, v4")
    p("s_waitcnt lgkmcnt(0)")
    p("s_cmp_lt_u32 s2, 128", "s_cselect_b32 s4, s40, s42", "s_cselect_b32 s5, s41, s43",
      "s_cselect_b32 s6, 4, 2", "s_lshl_b32 s6, s6, 20", "s_mov_b32 s7, 0x20000")
    srd(p, 8, 44, WS_XN, 4 * MB)
    srd(p, 12, 44, WS_SM, SM_SIZE)
    srd(p, 16, 46, 0, 6 * MB)
    p("s_and_b32 s21, s2, 127", "s_lshl_b32 s24, s21, 15", f"s_lshl_b32 s25, {sr(S_WAVE)}, 9", "s_add_u32 s24, s24, s25")
    p("s_cmp_ge_u32 s2, 192", f"s_cbranch_scc1 L_{name}_pf")
    for i in range(8):
        p(f"buffer_load_dwordx4 {vr(8 + 4 * i, 4)}, v4, s[4:7], s24 offen offset:{64 * i}")
    p(f"L_{name}_pf:")
    p("s_lshr_b32 s26, s2, 3", "s_mul_i32 s26, s26, 384", f"s_mul_i32 s27, {sr(S_WAVE)}, 96", "s_add_u32 s26, s26, s27",
      "s_and_b32 s27, s2, 7", "s_lshr_b32 s27, s27, 1", "s_lshl_b32 s27, s27, 9", "s_mov_b32 s28, 0x5556")
    for i in range(2):
        p(f"v_add_u32 v5, s26, v1" if i == 0 else "v_add_u32 v5, 64, v5")
        p("v_lshrrev_b32 v6, 2, v5",
          "v_lshlrev_b32 v6, 11, v6", "v_and_b32 v7, 3, v5", "v_lshl_add_u32 v6, v7, 7, v6")
        if i == 1:
            p("s_mov_b32 exec_hi, 0")
        p(f"buffer_load_dword v{72 + i}, v6, s[16:19], s27 offen")
    p("s_mov_b64 exec, -1")
    stamp(p, 1)
    stamp(p, 2)
    p("s_cmp_ge_u32 s2, 192", f"s_cbranch_scc1 L_{name}_fin")
    for i in range(8):
        p(f"s_waitcnt vmcnt({9 - i})")
        for d in range(4):
            s_, o = 8 + 4 * i + d, 80 + 8 * i + 2 * d
            p(f"v_lshlrev_b32 v{o}, 16, v{s_}", f"v_and_b32 v{o + 1}, 0xffff0000, v{s_}")
    def reduce_all(src_pairs, lds_off):
        p("v_add_f32 v6, v6, v7")
        sum_g(p, 6, 7)
        p(f"v_lshlrev_b32 v5, 4, v2", f"s_lshl_b32 s26, {sr(S_WAVE)}, 2", "v_add_u32 v7, s26, v5",
          f"ds_write_b32 v7, v6 offset:{lds_off}", "s_waitcnt lgkmcnt(0)", "s_barrier",
          f"ds_read_b128 v[76:79], v5 offset:{lds_off}", "s_waitcnt lgkmcnt(0)",
          "v_add_f32 v76, v76, v77", "v_add_f32 v78, v78, v79", "v_add_f32 v6, v76, v78")
    p("v_pk_add_f32 v[6:7], v[80:81], v[82:83]")
    for i in range(2, 32):
        p(f"v_pk_add_f32 v[6:7], v[6:7], {vr(80 + 2 * i, 2)}")
    reduce_all(None, 0)
    p("v_mul_f32 v74, 0x3a800000, v6")
    p("s_cmp_ge_u32 s2, 128", f"s_cbranch_scc1 L_{name}_wo")
    p("v_mov_b32 v75, v74")
    for i in range(32):
        p(f"v_pk_add_f32 {vr(80 + 2 * i, 2)}, {vr(80 + 2 * i, 2)}, v[74:75] neg_lo:[0,1] neg_hi:[0,1]")
    p("v_pk_mul_f32 v[6:7], v[80:81], v[80:81]")
    for i in range(1, 32):
        p(f"v_pk_fma_f32 v[6:7], {vr(80 + 2 * i, 2)}, {vr(80 + 2 * i, 2)}, v[6:7]")
    reduce_all(None, 256)
    p("v_mov_b32 v7, 0x3727c5ac", "v_fmac_f32 v7, 0x3a800000, v6", "v_rsq_f32 v6, v7", "s_nop 0", "v_mov_b32 v7, v6")
    p("v_lshlrev_b32 v5, 4, v1", f"s_lshl_b32 s24, {sr(S_WAVE)}, 20", "s_lshl_b32 s25, s21, 10", "s_add_u32 s24, s24, s25")
    for i in range(8):
        for d in range(4):
            o = 80 + 8 * i + 2 * d
            p(f"v_pk_mul_f32 {vr(o, 2)}, {vr(o, 2)}, v[6:7]")
        for d in range(4):
            o = 80 + 8 * i + 2 * d
            p(f"v_cvt_pk_bf16_f32 v{8 + 4 * i + d}, v{o}, v{o + 1}")
        p(f"buffer_store_dwordx4 {vr(8 + 4 * i, 4)}, v5, s[8:11], s24 offen" + stf(0), "s_add_u32 s24, s24, 131072")
    p(f"s_cmp_lg_u32 {sr(S_WAVE)}, 0", f"s_cbranch_scc1 L_{name}_fin")
    p("v_lshlrev_b32 v5, 2, v1", "s_mov_b64 exec, 0xffff", "s_lshl_b32 s24, s21, 6",
      f"buffer_store_dword v74, v5, s[12:15], s24 offen offset:{SM_MEANX}",
      f"s_branch L_{name}_fin")
    p(f"L_{name}_wo:")
    p(f"s_cmp_lg_u32 {sr(S_WAVE)}, 0", f"s_cbranch_scc1 L_{name}_fin")
    p("v_cvt_pk_bf16_f32 v8, v74, v74", "v_lshlrev_b32 v9, 16, v8", "v_sub_f32 v9, v74, v9", "v_cvt_pk_bf16_f32 v9, v9, v9",
      "v_cmp_eq_u32 vcc, 1, v3", "v_cndmask_b32 v8, v8, v9, vcc",
      "v_lshrrev_b32 v5, 2, v2", "v_lshlrev_b32 v5, 4, v5", "v_and_b32 v6, 3, v2", "v_lshl_add_u32 v5, v6, 1, v5",
      "v_lshl_add_u32 v5, v3, 6, v5", "s_mov_b32 exec_hi, 0",
      "s_lshr_b32 s24, s21, 1", "s_lshl_b32 s24, s24, 7", "s_and_b32 s25, s21, 1", "s_lshl_b32 s25, s25, 3",
      "s_add_u32 s24, s24, s25", f"s_add_u32 s24, s24, {SM_WB}",
      "buffer_store_short v8, v5, s[12:15], s24 offen")
    p(f"L_{name}_fin:")
    finish(p, name, 0)
    return name, p, (144, 0), (256, 256, 512)


def k1():
    name = "qkv_kernel"
    p = Prog()
    S, STAGE = CFG.get("k1_S", 5), 24576
    SRC, D0, D1 = 10, 14, 18
    g = Gemm(name="k1", MT=2, NT=12, KS=2, KT=16, U=CFG.get("k1_U", 2), S=S, STAGE=STAGE, D=7, a_mode="direct", AR=CFG.get("k1_AR", 4),
             ACC0=32, vA=9, w_step=64 * 6144, a_step=131072,
             dma=[(2 + j, S_SRDW, S_W, 0 if j < 4 else 4096, (j % 4) * 1024) for j in range(6)],
             rd=lambda ks, nt, par: ("tr", [((D0, D1)[par] + nt % 4, (nt // 4) * 8192 + (32 * ks + 16 * u) * 128) for u in range(2)]),
             rd_bases=lambda par: [((D0, D1)[par] + c, SRC + c) for c in range(4)],
             swap=lambda nt: nt >= 8, wait_stride=CFG.get("k1_ws", 2))
    entry(p, name, 256, [(40, ARG_WQKV), (44, ARG_WS)])
    xcd_map(p, 1, 8, 4)
    dma128_col(p, 27)
    p(f"s_lshl_b32 s33, {sr(S_NB)}, 7", "v_add_u32 v27, s33, v27", "s_mov_b32 s34, 6144")
    for j in range(6):
        p(f"s_mul_i32 s30, {sr(S_WAVE)}, 6", f"s_add_u32 s30, s30, {j}", "s_lshr_b32 s31, s30, 3", "s_and_b32 s30, s30, 7",
          "s_lshl_b32 s30, s30, 3", "s_lshl_b32 s31, s31, 11",
          "v_lshrrev_b32 v28, 3, v1", "v_add_u32 v28, s30, v28",
          "v_and_b32 v29, 0x23, v28", "v_bfe_u32 v30, v28, 2, 2", "v_lshl_add_u32 v29, v30, 3, v29",
          "v_bfe_u32 v30, v28, 4, 1", "v_lshl_add_u32 v29, v30, 2, v29",
          "v_mul_lo_u32 v29, s34, v29", f"s_sub_u32 s31, s31, {(j % 4) * 1024}",
          f"v_add3_u32 v{2 + j}, v29, v27, s31")
    p("v_lshlrev_b32 v9, 4, v1")
    p("s_waitcnt lgkmcnt(0)")
    xstamp(p, 0)
    srd(p, S_SRDW, 40, 0, 6 * MB)
    srd(p, S_SRDA, 44, WS_XN, 4 * MB)
    p(f"s_mov_b32 {sr(S_W)}, 0", f"s_lshl_b32 {sr(S_A)}, {sr(S_MB)}, 13", f"s_lshl_b32 s30, {sr(S_WAVE)}, 11",
      f"s_add_u32 {sr(S_A)}, {sr(S_A)}, s30", f"s_mul_i32 {sr(S_M)}, {sr(S_WAVE)}, 6144",
      f"s_add_u32 {sr(S_MEND)}, {sr(S_M)}, {S * STAGE}", f"s_mov_b32 {sr(S_R)}, 0")
    xstamp(p, 1)
    g.emit_start(p)
    xstamp(p, 2)
    g.after_bar = lambda: xstamp(p, 3)
    rd128_bases(p, SRC, D0)
    zero_acc(p, g)
    srd(p, 12, 44, WS_Q, 12 * MB)
    stamp(p, 1)
    g.dbg = CFG.get("dbg", 0)
    g.zigzag = CFG.get("zz", 1)
    g.emit_main(p)
    stamp(p, 2)
    p("v_and_b32 v2, 15, v1", "v_lshrrev_b32 v3, 4, v1", "v_lshlrev_b32 v4, 9, v3",
      "v_lshl_add_u32 v5, v2, 4, v4",
      "v_and_b32 v6, 7, v2", "v_lshl_add_u32 v6, v6, 4, v4", "v_lshrrev_b32 v7, 3, v2", "v_lshl_add_u32 v6, v7, 8, v6",
      f"s_lshl_b32 s30, {sr(S_NB)}, 18", f"s_lshl_b32 s31, {sr(S_MB)}, 13", "s_add_u32 s30, s30, s31",
      f"s_lshl_b32 s31, {sr(S_WAVE)}, 11", "s_add_u32 s30, s30, s31",
      "s_mov_b32 s36, 0x3e8293ee", "s_mov_b32 s37, 0x3e8293ee")
    T = 8
    tq = 0
    def tmp():
        nonlocal tq
        tq = (tq + 1) % 5
        return 12 + 4 * tq
    for hh in range(2):
        for sub in range(3):
            p(f"s_add_u32 s31, s30, {hh * 131072 + sub * 4 * MB}")
            for x in range(2):
                t = tmp()
                if sub < 2:
                    r0, r1 = g.acc(sub * 4 + 2 * hh, x), g.acc(sub * 4 + 2 * hh + 1, x)
                else:
                    r0, r1 = g.acc(8 + 2 * hh + x, 0), g.acc(8 + 2 * hh + x, 1)
                if sub == 0:
                    for r in (r0, r0 + 2, r1, r1 + 2):
                        p(f"v_pk_mul_f32 {vr(r, 2)}, {vr(r, 2)}, s[36:37]")
                for d, r in enumerate((r0, r0 + 2, r1, r1 + 2)):
                    p(f"v_cvt_pk_bf16_f32 v{t + d}, v{r}, v{r + 1}")
                va, off = (6, x * 128) if sub == 1 else (5, x * 256)
                p(f"buffer_store_dwordx4 {vr(t, 4)}, v{va}, s[12:15], s31 offen offset:{off}" + stf(1))
    finish(p, name, 1)
    return name, p, (32 + 96, g.nagpr), (256, 256, S * STAGE)


def k35(which):
    name = {3: "oproj_kernel", 5: "down_kernel"}[which]
    p = Prog()
    S, STAGE = CFG.get(f"k{which}_S", 5), 16384
    SRC, D0, D1 = 10, 14, 18
    X0, X1 = 22, 23
    WBOFF = S * STAGE
    NT = 5 if which == 3 else 4
    def rd(ks, nt, par):
        if nt == 4:
            return ("b128", (X0, X1)[par], ks * 128)
        return ("tr", [((D0, D1)[par] + nt, (32 * ks + 16 * u) * 128) for u in range(2)])
    g = Gemm(name=f"k{which}", MT=2, NT=NT, KS=4, KT=8 if which == 3 else 28, U=CFG.get(f"k{which}_U", 2), S=S, STAGE=STAGE, D=7, a_mode="direct", AR=CFG.get(f"k{which}_AR", 8),
             ACC0=64, vA=9, w_step=128 * 2048, a_step=131072,
             dma=[(2 + j, S_SRDW, S_W, 0, j * 1024) for j in range(4)],
             rd=rd, rd_bases=lambda par: [((D0, D1)[par] + c, SRC + c) for c in range(4)], wait_stride=CFG.get("k35_ws", 2))
    if which == 3:
        g.extra_adv = lambda par: [f"v_add_u32 v{(X0, X1)[par]}, 512, v{(X1, X0)[par]}"]
    entry(p, name, 256, [(40, ARG_WO if which == 3 else ARG_WD), (44, ARG_WS), (46, ARG_X if which == 3 else ARG_OUT)])
    xcd_map(p, 2, 4, 8)
    dma128_col(p, 27)
    p(f"s_lshl_b32 s33, {sr(S_NB)}, 7", f"s_lshl_b32 s30, {sr(S_WAVE)}, 16", "s_add_u32 s33, s33, s30",
      "v_lshrrev_b32 v28, 3, v1", "v_lshl_add_u32 v27, v28, 11, v27", "v_add_u32 v2, s33, v27")
    for j in range(1, 4):
        p(f"v_add_u32 v{2 + j}, {j * (8 * 2048 - 1024)}, v2")
    p("v_lshlrev_b32 v9, 4, v1")
    p("s_waitcnt lgkmcnt(0)")
    xstamp(p, 0)
    srd(p, S_SRDW, 40, 0, 2 * MB if which == 3 else 3584 * 2048)
    srd(p, S_SRDA, 44, WS_O if which == 3 else WS_ACT, 4 * MB if which == 3 else ACT_SIZE)
    srd(p, 12, 44, WS_SM, SM_SIZE)
    p(f"s_mov_b32 {sr(S_W)}, 0", f"s_lshl_b32 {sr(S_A)}, {sr(S_MB)}, 13", f"s_lshl_b32 s30, {sr(S_WAVE)}, 11",
      f"s_add_u32 {sr(S_A)}, {sr(S_A)}, s30", f"s_mov_b32 s38, {sr(S_A)}", f"s_lshl_b32 {sr(S_M)}, {sr(S_WAVE)}, 12",
      f"s_add_u32 {sr(S_MEND)}, {sr(S_M)}, {S * STAGE}", f"s_mov_b32 {sr(S_R)}, 0")
    if which == 3:
        p(f"s_lshl_b32 s30, {sr(S_WAVE)}, 10", f"s_add_u32 m0, s30, {WBOFF}", f"s_add_u32 s30, s30, {SM_WB}",
          "buffer_load_dwordx4 v9, s[12:15], s30 offen lds")
    xstamp(p, 1)
    g.emit_start(p)
    xstamp(p, 2)
    g.after_bar = lambda: xstamp(p, 3)
    srd(p, 16, 46, 0, 4 * MB)
    srd(p, 48, 44, WS_HC, 4 * MB)
    p(f"s_lshl_b32 s39, {sr(S_MB)}, 7", f"s_lshl_b32 s30, {sr(S_WAVE)}, 5", "s_add_u32 s39, s39, s30",
      "v_and_b32 v24, 15, v1", "v_lshrrev_b32 v25, 4, v1", "v_lshlrev_b32 v26, 2, v24",
      "s_lshl_b32 s35, s39, 2")
    if which == 3:
        p("v_lshlrev_b32 v27, 11, v24", "v_lshl_add_u32 v27, v25, 3, v27",
          "s_lshl_b32 s36, s39, 11", f"s_lshl_b32 s30, {sr(S_NB)}, 7", "s_add_u32 s36, s36, s30", "s_add_u32 s37, s36, 32768")
        g.more_vm(p, [f"buffer_load_dwordx2 {vr(32 + 8 * mt + 2 * t, 2)}, v27, s[16:19], s{36 + mt} offen offset:{32 * t}"
                      for mt in range(2) for t in range(4)])
        g.more_vm(p, [f"buffer_load_dword v{48 + mt}, v26, s[12:15], s35 offen offset:{SM_MEANX + 64 * mt}" for mt in range(2)])
        p("v_and_b32 v28, 1, v1", "v_lshlrev_b32 v28, 6, v28", f"v_lshl_add_u32 v{X0}, v25, 4, v28", f"v_add_u32 v{X0}, {WBOFF}, v{X0}")
    else:
        p(f"s_lshl_b32 s36, {sr(S_NB)}, 18", "s_add_u32 s36, s36, s38", "s_add_u32 s37, s36, 131072",
          f"s_add_u32 s34, s35, {SM_MEANH}", "v_lshl_add_u32 v27, v25, 15, v26")
        g.more_vm(p, [f"buffer_load_dwordx4 {vr(32 + 8 * mt + 4 * kb, 4)}, v9, s[48:51], s{36 + kb} offen offset:{1024 * mt}"
                      for mt in range(2) for kb in range(2)])
        g.more_vm(p, [f"buffer_load_dword v{48 + mt}, v26, s[12:15], s34 offen offset:{64 * mt}" for mt in range(2)])
        for i in range(4):
            p(f"s_add_u32 s34, s35, {SM_SSQ + i * 8192}")
            g.more_vm(p, [f"buffer_load_dword v{50 + 4 * mt + i}, v27, s[12:15], s34 offen offset:{64 * mt}" for mt in range(2)])
    rd128_bases(p, SRC, D0)
    zero_acc(p, g)
    stamp(p, 1)
    g.dbg = CFG.get("dbg", 0)
    g.zigzag = CFG.get("zz", 1)
    g.emit_main(p)
    stamp(p, 2)
    if which == 3:
        p(f"s_lshl_b32 s36, {sr(S_NB)}, 18", "s_add_u32 s36, s36, s38", "s_add_u32 s37, s36, 131072",
          f"s_lshl_b32 s30, {sr(S_NB)}, 13", "s_add_u32 s30, s30, s35", f"s_add_u32 s30, s30, {SM_SSQ}",
          f"s_add_u32 s31, s35, {SM_MEANH}")
        for mt in range(2):
            e = g.acc(4, mt)
            m = 48 + mt
            p(f"v_add_f32 v{e}, v{e}, v{e + 1}", f"v_add_f32 v{m}, v{m}, v{e}")
            p(f"v_mov_b32 v2, 0", "v_mov_b32 v3, 0")
            for t in range(4):
                a = g.acc(t, mt)
                x = 32 + 8 * mt + 2 * t
                for d in range(2):
                    p(f"v_lshlrev_b32 v4, 16, v{x + d}", f"v_and_b32 v5, 0xffff0000, v{x + d}",
                      f"v_sub_f32 v4, v4, v{m}", f"v_sub_f32 v5, v5, v{m}",
                      f"v_pk_add_f32 {vr(a + 2 * d, 2)}, {vr(a + 2 * d, 2)}, v[4:5]",
                      f"v_pk_fma_f32 v[2:3], {vr(a + 2 * d, 2)}, {vr(a + 2 * d, 2)}, v[2:3]",
                      f"v_cvt_pk_bf16_f32 v{x + d}, v{a + 2 * d}, v{a + 2 * d + 1}")
                if t % 2 == 1:
                    p(f"buffer_store_dwordx4 {vr(x - 2, 4)}, v9, s[48:51], s{36 + t // 2} offen offset:{1024 * mt}" + stf(3))
            p("v_add_f32 v2, v2, v3")
            sum_g(p, 2, 3)
            p(f"v_mov_b32 v{6 + mt}, v2")
        p("s_mov_b64 exec, 0xffff")
        for mt in range(2):
            p(f"buffer_store_dword v{6 + mt}, v26, s[12:15], s30 offen offset:{64 * mt}")
        p(f"s_cmp_lg_u32 {sr(S_NB)}, 0", f"s_cbranch_scc1 L_{name}_fin")
        for mt in range(2):
            p(f"buffer_store_dword v{48 + mt}, v26, s[12:15], s31 offen offset:{64 * mt}")
        p(f"L_{name}_fin:")
    else:
        p("v_lshlrev_b32 v27, 11, v24", "v_and_b32 v28, 1, v25", "v_lshl_add_u32 v27, v28, 5, v27",
          "v_lshrrev_b32 v28, 1, v25", "v_lshl_add_u32 v27, v28, 4, v27",
          "s_lshl_b32 s36, s39, 11", f"s_lshl_b32 s30, {sr(S_NB)}, 7", "s_add_u32 s36, s36, s30", "s_add_u32 s37, s36, 32768")
        for mt in range(2):
            q = 50 + 4 * mt
            m = 48 + mt
            p(f"v_add_f32 v{q}, v{q}, v{q + 1}", f"v_add_f32 v{q + 2}, v{q + 2}, v{q + 3}", f"v_add_f32 v2, v{q}, v{q + 2}")
            sum_g(p, 2, 3)
            p("v_mov_b32 v3, 0x3727c5ac", "v_fmac_f32 v3, 0x3a800000, v2", "v_rcp_f32 v2, v3", "s_nop 0", "v_mov_b32 v3, v2")
            for t in range(4):
                a = g.acc(t, mt)
                x = 32 + 8 * mt + 2 * t
                for d in range(2):
                    p(f"v_lshlrev_b32 v4, 16, v{x + d}", f"v_and_b32 v5, 0xffff0000, v{x + d}",
                      f"v_add_f32 v4, v4, v{m}", f"v_add_f32 v5, v5, v{m}",
                      f"v_pk_fma_f32 v[4:5], {vr(a + 2 * d, 2)}, v[2:3], v[4:5]",
                      f"v_cvt_pk_bf16_f32 v{x + d}, v4, v5")
                if t % 2 == 1:
                    p(f"v_permlane16_swap_b32 v{x - 2}, v{x}", f"v_permlane16_swap_b32 v{x - 1}, v{x + 1}",
                      f"buffer_store_dwordx4 {vr(x - 2, 4)}, v27, s[16:19], s{36 + mt} offen offset:{64 * (t // 2)}" + stf(5))
    finish(p, name, which)
    return name, p, (64 + NT * 2 * 4, g.nagpr), (256, 256, S * STAGE + (4096 if which == 3 else 0))


def k4():
    name = "glu_kernel"
    p = Prog()
    S, STAGE = CFG.get("k4_S", 5), 28672
    SRC, D0, D1 = 10, 11, 12
    g = Gemm(name="k4", MT=4, NT=14, KS=2, KT=16, U=CFG.get("k4_U", 2), S=S, STAGE=STAGE, D=CFG.get("k4_D", 3), a_mode="direct",
             AR=CFG.get("k4_AR", 4), ACC0=32, vA=9, w_step=64 * 7168, a_step=131072,
             dma=[(2 + j, S_SRDW, S_W, 0 if j < 4 else 4096, (j % 4) * 1024) for j in range(7)],
             rd=lambda ks, nt, par: ("tr", [((D0, D1)[par], (nt // 7) * 14336 + (32 * ks + 16 * u) * 224 + (nt % 7) * 32) for u in range(2)]),
             rd_bases=lambda par: [((D0, D1)[par], SRC)])
    entry(p, name, 256, [(40, ARG_WG), (42, ARG_WU), (44, ARG_WS)])
    xcd_map(p, 1, 4, 8)
    assert all((e * 4682) >> 16 == e // 14 for e in range(896))
    p(f"s_and_b32 s30, {sr(S_WAVE)}, 1", "s_mul_i32 s30, s30, 448", f"s_and_b32 s33, {sr(S_NB)}, 1", "s_lshl_b32 s33, s33, 1",
      f"s_mul_i32 s35, {sr(S_NB)}, 224", "s_movk_i32 s34, 7168", "v_add_u32 v27, s30, v1")
    for j in range(7):
        p(f"v_add_u32 v28, {64 * j}, v27" if j else "v_mov_b32 v28, v27",
          "v_mul_u32_u24 v29, 4682, v28", "v_lshrrev_b32 v29, 16, v29",
          "v_mul_u32_u24 v30, 14, v29", "v_sub_u32 v30, v28, v30", "v_add_u32 v30, s33, v30",
          "v_subrev_u32 v31, 14, v30", "v_min_u32 v30, v30, v31",
          "v_mul_lo_u32 v29, s34, v29", "v_lshl_add_u32 v29, v30, 4, v29",
          f"s_sub_u32 s31, s35, {(j % 4) * 1024}", f"v_add_u32 v{2 + j}, s31, v29")
    p("v_lshlrev_b32 v9, 4, v1")
    p("s_waitcnt lgkmcnt(0)")
    xstamp(p, 0)
    p(f"s_cmp_lt_u32 {sr(S_WAVE)}, 2", "s_cselect_b32 s4, s40, s42", "s_cselect_b32 s5, s41, s43",
      f"s_mov_b32 s6, {1024 * 7168}", "s_mov_b32 s7, 0x20000")
    srd(p, S_SRDA, 44, WS_HC, 4 * MB)
    p(f"s_mov_b32 {sr(S_W)}, 0", f"s_lshl_b32 {sr(S_A)}, {sr(S_MB)}, 14", f"s_lshl_b32 s30, {sr(S_WAVE)}, 12",
      f"s_add_u32 {sr(S_A)}, {sr(S_A)}, s30", f"s_mov_b32 s38, {sr(S_A)}", f"s_mul_i32 {sr(S_M)}, {sr(S_WAVE)}, 7168",
      f"s_add_u32 {sr(S_MEND)}, {sr(S_M)}, {S * STAGE}", f"s_mov_b32 {sr(S_R)}, 0")
    xstamp(p, 1)
    g.emit_start(p)
    xstamp(p, 2)
    g.after_bar = lambda: xstamp(p, 3)
    p("v_lshrrev_b32 v28, 2, v1", "v_mul_u32_u24 v28, 224, v28", "v_and_b32 v29, 3, v1", f"v_lshl_add_u32 v{SRC}, v29, 3, v28",
      f"v_mov_b32 v{D0}, v{SRC}")
    zero_acc(p, g)
    srd(p, 12, 44, WS_ACT, ACT_SIZE)
    stamp(p, 1)
    g.dbg = CFG.get("dbg", 0)
    g.zigzag = CFG.get("zz", 1)
    g.emit_main(p)
    stamp(p, 2)
    p(f"s_lshr_b32 s30, {sr(S_NB)}, 1", "s_mul_i32 s30, s30, 7", f"s_and_b32 s31, {sr(S_NB)}, 1",
      "s_add_u32 s32, s30, 3", "s_lshl_b32 s32, s32, 17", "s_add_u32 s32, s32, s38", "s_lshl_b32 s33, s31, 3", "s_add_u32 s32, s32, s33",
      "s_lshl_b32 s31, s31, 2", "s_add_u32 s30, s30, s31", "s_lshl_b32 s30, s30, 17", "s_add_u32 s30, s30, s38")
    tq = 0
    for pr in range(4):
        for mt in range(4):
            t = 12 + 4 * tq
            tq = (tq + 1) % 5
            tiles = (2 * pr, 2 * pr + 1) if pr < 3 else (6,)
            for i, nt in enumerate(tiles):
                a, b = g.acc(nt, mt), g.acc(nt + 7, mt)
                p(f"v_pk_mul_f32 {vr(a, 2)}, {vr(a, 2)}, {vr(b, 2)}", f"v_pk_mul_f32 {vr(a + 2, 2)}, {vr(a + 2, 2)}, {vr(b + 2, 2)}")
            for i, nt in enumerate(tiles):
                a = g.acc(nt, mt)
                p(f"v_cvt_pk_bf16_f32 v{t + 2 * i}, v{a}, v{a + 1}", f"v_cvt_pk_bf16_f32 v{t + 2 * i + 1}, v{a + 2}, v{a + 3}")
            if pr < 3:
                p(f"buffer_store_dwordx4 {vr(t, 4)}, v9, s[12:15], s30 offen offset:{1024 * mt}" + stf(4))
            else:
                p(f"buffer_store_dwordx2 {vr(t, 2)}, v9, s[12:15], s32 offen offset:{1024 * mt}" + stf(4))
        if pr < 2:
            p("s_add_u32 s30, s30, 131072")
    finish(p, name, 4)
    return name, p, (256, g.nagpr), (256, 256, S * STAGE)


from attn import k2


def build(kernels=None):
    KID[0] = 0
    ks = [k0(), k1(), k2(CFG, entry, finish, stamp, srd), k35(3), k4(), k35(5)]
    for i in range(CFG.get("pad", 0)):
        q = Prog()
        q(f"nop{i}_kernel:", "s_endpgm")
        ks.insert(CFG.get("padpos", 3), (f"nop{i}_kernel", q, (8, 0), (256, 256, 0)))
    if kernels is not None:
        ks = [k for i, k in enumerate(ks) if i in kernels]
    head = open(f"cdna_kernels/{NAME}.s.ref").read().split("; Override launch")[0]
    out = head
    out += "; Generated by a script (software-pipelined MFMA kernels); one launch per phase.\n"
    for name, p, regs, (grid, blk, lds) in ks:
        out += f"; @launch kernel={name} grid=({grid},1,1) block=({blk},1,1) lds={lds}\n"
    out += '.amdgcn_target "amdgcn-amd-amdhsa--gfx950"\n'
    for name, p, regs, _ in ks:
        out += kernel_header(name) + p.text()
    for name, p, regs, _ in ks:
        out += kernel_desc(name, regs[0], regs[1])
    return out


if __name__ == "__main__":
    dst = f"cdna_kernels/{NAME}.s"
    for a in sys.argv[1:]:
        if "=" in a:
            k, v = a.split("=")
            if k == "out":
                dst = v
            else:
                CFG[k] = int(v)
    open(dst, "w").write(build())
    print("wrote", dst)
```

```python
import sys
from asmlib import *
from gemm import *

NAME = "sequential_preLN__softmax_full_mha__glu_gated_bilinear__prompt"
MB = 1 << 20
WS_XN, WS_Q, WS_K, WS_V, WS_O, WS_HC, WS_ACT = 0, 4 * MB, 8 * MB, 12 * MB, 16 * MB, 20 * MB, 24 * MB
WS_SM = 40 * MB
SM_MEANX, SM_MEANH, SM_WB, SM_SSQ = 0, 8192, 16384, 32768
SM_SIZE = 32768 + 16 * 8192
ACT_SIZE = 112 * 128 * 1024
ARG_X, ARG_WQKV, ARG_WO, ARG_WG, ARG_WU, ARG_WD, ARG_OUT, ARG_DBG, ARG_WS = 0, 8, 16, 32, 40, 48, 56, 64, 72
CFG = dict(stamp=False)


def stf(k):
    return {0: "", 1: " sc1", 2: " nt", 3: " sc0 sc1"}[CFG.get(f"k{k}_st", 1)]


def srd(p, d, ptr, off, size):
    if off:
        p(f"s_add_u32 {sr(d)}, {sr(ptr)}, {off}", f"s_addc_u32 {sr(d + 1)}, {sr(ptr + 1)}, 0")
    else:
        p(f"s_mov_b32 {sr(d)}, {sr(ptr)}", f"s_mov_b32 {sr(d + 1)}, {sr(ptr + 1)}")
    p(f"s_mov_b32 {sr(d + 2)}, {size}", f"s_mov_b32 {sr(d + 3)}, 0x20000")


def entry(p, name, nwg, args):
    p(f"{name}:")
    if CFG["stamp"]:
        p("s_memrealtime s[80:81]")
    p(f"s_cmp_ge_u32 s2, {nwg}", f"s_cbranch_scc1 L_{name}_end")
    for s, off in args:
        p(f"s_load_dwordx2 {sr(s, 2)}, s[0:1], {off}")
    if CFG["stamp"]:
        p(f"s_load_dwordx2 s[90:91], s[0:1], {ARG_WS}")
    p("v_lshrrev_b32 v1, 6, v0", f"v_readfirstlane_b32 {sr(S_WAVE)}, v1", "v_and_b32 v1, 63, v0")


def code_prefetch(p, lo, hi, vt, vd, st, rounds=1, tid="v0"):
    p(f"s_getpc_b64 {sr(st, 2)}", f"L_pc_{lo}_{len(p.l)}:")
    lab = p.l[-1][:-1]
    p(f"s_add_u32 {sr(st)}, {sr(st)}, {lo}-{lab}", f"s_addc_u32 {sr(st + 1)}, {sr(st + 1)}, ({lo}-{lab})>>32",
      f"s_mov_b32 {sr(st + 2)}, {hi}-{lo}", f"s_mov_b32 {sr(st + 3)}, 0x20000",
      f"v_lshlrev_b32 {vr(vt)}, 7, {tid}")
    for r in range(rounds):
        if r:
            p(f"v_add_u32 {vr(vt)}, 32768, {vr(vt)}")
        p(f"buffer_load_dword {vr(vd)}, {vr(vt)}, {sr(st, 4)}, 0 offen")


def xstamp(p, k):
    if CFG["stamp"] and CFG.get("xs", 0):
        p("s_memrealtime s[60:61]", "s_waitcnt lgkmcnt(0)", f"s_mov_b32 s{56 + k}, s60")


def stamp(p, k):
    if CFG["stamp"]:
        p(f"s_memrealtime s[{80 + 2 * k}:{81 + 2 * k}]")
        p(f"s_memtime s[{70 + 2 * k}:{71 + 2 * k}]")


KID = [0]


def finish(p, name, kid, nwaves=4):
    kid = KID[0]
    KID[0] += 1
    if CFG["stamp"]:
        p("s_waitcnt vmcnt(0)", "s_memrealtime s[88:89]", "s_waitcnt lgkmcnt(0)")
        p(f"s_mul_i32 s70, s2, {nwaves}", f"s_add_u32 s70, s70, {sr(S_WAVE)}", "s_lshl_b32 s70, s70, 6",
          f"s_add_u32 s70, s70, {64 * MB + kid * 131072}", "s_add_u32 s90, s90, s70", "s_addc_u32 s91, s91, 0",
          "v_mov_b32 v2, s80", "v_mov_b32 v3, s82", "v_mov_b32 v4, s84", "v_mov_b32 v5, s86", "v_mov_b32 v6, s88",
          "s_sub_u32 s74, s74, s72", "v_mov_b32 v7, s74", "v_mov_b32 v1, 0", "s_mov_b64 exec, 1",
          "global_store_dwordx4 v1, v[2:5], s[90:91]", "global_store_dwordx2 v1, v[6:7], s[90:91] offset:16",
          "v_mov_b32 v8, s56", "v_mov_b32 v9, s57", "v_mov_b32 v10, s58", "v_mov_b32 v11, s59",
          "global_store_dwordx4 v1, v[8:11], s[90:91] offset:32")
    p(f"L_{name}_end:", "s_endpgm")


def xcd_map(p, a_bits, ma, nb_per):
    lm = ma.bit_length() - 1
    p("s_and_b32 s30, s2, 7", "s_lshr_b32 s31, s2, 3")
    if CFG.get("map_xor", 0):
        p(f"s_xor_b32 s31, s31, {CFG['map_xor']}")
    p(
      f"s_and_b32 {sr(S_MB)}, s30, {(1 << a_bits) - 1}", f"s_lshl_b32 {sr(S_MB)}, {sr(S_MB)}, {lm}",
      f"s_and_b32 s32, s31, {ma - 1}", f"s_add_u32 {sr(S_MB)}, {sr(S_MB)}, s32",
      f"s_lshr_b32 {sr(S_NB)}, s30, {a_bits}", f"s_mul_i32 {sr(S_NB)}, {sr(S_NB)}, {nb_per}",
      f"s_lshr_b32 s32, s31, {lm}", f"s_add_u32 {sr(S_NB)}, {sr(S_NB)}, s32")


def zero_acc(p, g):
    for r in range(g.ACC0, g.ACC0 + g.MT * g.NT * 4):
        p(f"v_mov_b32 v{r}, 0")


def rd128_bases(p, src0, dst0):
    p("v_lshrrev_b32 v28, 2, v1", "v_lshlrev_b32 v29, 7, v28", "v_and_b32 v30, 3, v1", "v_lshl_add_u32 v29, v30, 3, v29",
      "v_bfe_u32 v28, v28, 1, 2")
    for c in range(4):
        p(f"v_xor_b32 v30, {c}, v28", f"v_lshl_add_u32 {vr(src0 + c)}, v30, 5, v29", f"v_mov_b32 {vr(dst0 + c)}, {vr(src0 + c)}")


def dma128_col(p, dst):
    p("v_bfe_u32 v28, v1, 4, 2",
      "v_bfe_u32 v29, v1, 1, 2",
      "v_xor_b32 v28, v28, v29",
      "v_and_b32 v29, 1, v1", "v_lshlrev_b32 v29, 4, v29",
      f"v_lshl_add_u32 {vr(dst)}, v28, 5, v29")


def sum_g(p, v, t):
    p(f"v_mov_b32 {vr(t)}, {vr(v)}", f"v_permlane16_swap_b32 {vr(t)}, {vr(v)}", f"v_add_f32 {vr(v)}, {vr(v)}, {vr(t)}",
      f"v_mov_b32 {vr(t)}, {vr(v)}", f"v_permlane32_swap_b32 {vr(t)}, {vr(v)}", f"v_add_f32 {vr(v)}, {vr(v)}, {vr(t)}")


def k0():
    name = "ln1_kernel"
    p = Prog()
    entry(p, name, 256, [(40, ARG_X), (42, ARG_WO), (44, ARG_WS), (46, ARG_WQKV)])
    p("v_and_b32 v2, 15, v1", "v_lshrrev_b32 v3, 4, v1",
      "v_lshlrev_b32 v4, 11, v2", "v_lshl_add_u32 v4, v3, 4, v4")
    p("s_waitcnt lgkmcnt(0)")
    p("s_cmp_lt_u32 s2, 128", "s_cselect_b32 s4, s40, s42", "s_cselect_b32 s5, s41, s43",
      "s_cselect_b32 s6, 4, 2", "s_lshl_b32 s6, s6, 20", "s_mov_b32 s7, 0x20000")
    srd(p, 8, 44, WS_XN, 4 * MB)
    srd(p, 12, 44, WS_SM, SM_SIZE)
    srd(p, 16, 46, 0, 6 * MB)
    p("s_and_b32 s21, s2, 127", "s_lshl_b32 s24, s21, 15", f"s_lshl_b32 s25, {sr(S_WAVE)}, 9", "s_add_u32 s24, s24, s25")
    p("s_cmp_ge_u32 s2, 192", f"s_cbranch_scc1 L_{name}_pf")
    for i in range(8):
        p(f"buffer_load_dwordx4 {vr(8 + 4 * i, 4)}, v4, s[4:7], s24 offen offset:{64 * i}")
    p(f"L_{name}_pf:")
    p("s_lshr_b32 s26, s2, 3", "s_mul_i32 s26, s26, 384", f"s_mul_i32 s27, {sr(S_WAVE)}, 96", "s_add_u32 s26, s26, s27",
      "s_and_b32 s27, s2, 7", "s_lshr_b32 s27, s27, 1", "s_lshl_b32 s27, s27, 9", "s_mov_b32 s28, 0x5556")
    for i in range(2):
        p(f"v_add_u32 v5, s26, v1" if i == 0 else "v_add_u32 v5, 64, v5")
        p("v_lshrrev_b32 v6, 2, v5",
          "v_lshlrev_b32 v6, 11, v6", "v_and_b32 v7, 3, v5", "v_lshl_add_u32 v6, v7, 7, v6")
        if i == 1:
            p("s_mov_b32 exec_hi, 0")
        p(f"buffer_load_dword v{72 + i}, v6, s[16:19], s27 offen")
    p("s_mov_b64 exec, -1")
    NPF = 2
    if CFG.get("cpf", 0):
        code_prefetch(p, "L_text_begin", "L_text_end", 5, 74, 52, rounds=2)
        NPF = 4
    stamp(p, 1)
    stamp(p, 2)
    p("s_cmp_ge_u32 s2, 192", f"s_cbranch_scc1 L_{name}_fin")
    for i in range(8):
        p(f"s_waitcnt vmcnt({7 + NPF - i})")
        for d in range(4):
            s_, o = 8 + 4 * i + d, 80 + 8 * i + 2 * d
            p(f"v_lshlrev_b32 v{o}, 16, v{s_}", f"v_and_b32 v{o + 1}, 0xffff0000, v{s_}")
    def reduce_all(src_pairs, lds_off):
        p("v_add_f32 v6, v6, v7")
        sum_g(p, 6, 7)
        p(f"v_lshlrev_b32 v5, 4, v2", f"s_lshl_b32 s26, {sr(S_WAVE)}, 2", "v_add_u32 v7, s26, v5",
          f"ds_write_b32 v7, v6 offset:{lds_off}", "s_waitcnt lgkmcnt(0)", "s_barrier",
          f"ds_read_b128 v[76:79], v5 offset:{lds_off}", "s_waitcnt lgkmcnt(0)",
          "v_add_f32 v76, v76, v77", "v_add_f32 v78, v78, v79", "v_add_f32 v6, v76, v78")
    p("v_pk_add_f32 v[6:7], v[80:81], v[82:83]")
    for i in range(2, 32):
        p(f"v_pk_add_f32 v[6:7], v[6:7], {vr(80 + 2 * i, 2)}")
    reduce_all(None, 0)
    p("v_mul_f32 v74, 0x3a800000, v6")
    p("s_cmp_ge_u32 s2, 128", f"s_cbranch_scc1 L_{name}_wo")
    p("v_mov_b32 v75, v74")
    for i in range(32):
        p(f"v_pk_add_f32 {vr(80 + 2 * i, 2)}, {vr(80 + 2 * i, 2)}, v[74:75] neg_lo:[0,1] neg_hi:[0,1]")
    p("v_pk_mul_f32 v[6:7], v[80:81], v[80:81]")
    for i in range(1, 32):
        p(f"v_pk_fma_f32 v[6:7], {vr(80 + 2 * i, 2)}, {vr(80 + 2 * i, 2)}, v[6:7]")
    reduce_all(None, 256)
    p("v_mov_b32 v7, 0x3727c5ac", "v_fmac_f32 v7, 0x3a800000, v6", "v_rsq_f32 v6, v7", "s_nop 0", "v_mov_b32 v7, v6")
    p("v_lshlrev_b32 v5, 4, v1", f"s_lshl_b32 s24, {sr(S_WAVE)}, 20", "s_lshl_b32 s25, s21, 10", "s_add_u32 s24, s24, s25")
    for i in range(8):
        for d in range(4):
            o = 80 + 8 * i + 2 * d
            p(f"v_pk_mul_f32 {vr(o, 2)}, {vr(o, 2)}, v[6:7]")
        for d in range(4):
            o = 80 + 8 * i + 2 * d
            p(f"v_cvt_pk_bf16_f32 v{8 + 4 * i + d}, v{o}, v{o + 1}")
        p(f"buffer_store_dwordx4 {vr(8 + 4 * i, 4)}, v5, s[8:11], s24 offen" + stf(0), "s_add_u32 s24, s24, 131072")
    p(f"s_cmp_lg_u32 {sr(S_WAVE)}, 0", f"s_cbranch_scc1 L_{name}_fin")
    p("v_lshlrev_b32 v5, 2, v1", "s_mov_b64 exec, 0xffff", "s_lshl_b32 s24, s21, 6",
      f"buffer_store_dword v74, v5, s[12:15], s24 offen offset:{SM_MEANX}",
      f"s_branch L_{name}_fin")
    p(f"L_{name}_wo:")
    p(f"s_cmp_lg_u32 {sr(S_WAVE)}, 0", f"s_cbranch_scc1 L_{name}_fin")
    p("v_cvt_pk_bf16_f32 v8, v74, v74", "v_lshlrev_b32 v9, 16, v8", "v_sub_f32 v9, v74, v9", "v_cvt_pk_bf16_f32 v9, v9, v9",
      "v_cmp_eq_u32 vcc, 1, v3", "v_cndmask_b32 v8, v8, v9, vcc",
      "v_lshrrev_b32 v5, 2, v2", "v_lshlrev_b32 v5, 4, v5", "v_and_b32 v6, 3, v2", "v_lshl_add_u32 v5, v6, 1, v5",
      "v_lshl_add_u32 v5, v3, 6, v5", "s_mov_b32 exec_hi, 0",
      "s_lshr_b32 s24, s21, 1", "s_lshl_b32 s24, s24, 7", "s_and_b32 s25, s21, 1", "s_lshl_b32 s25, s25, 3",
      "s_add_u32 s24, s24, s25", f"s_add_u32 s24, s24, {SM_WB}",
      "buffer_store_short v8, v5, s[12:15], s24 offen")
    p(f"L_{name}_fin:")
    finish(p, name, 0)
    return name, p, (144, 0), (256, 256, 512)


def k1():
    name = "qkv_kernel"
    p = Prog()
    S, STAGE = CFG.get("k1_S", 5), 24576
    SRC, D0, D1 = 10, 14, 18
    g = Gemm(name="k1", MT=2, NT=12, KS=2, KT=16, U=CFG.get("k1_U", 2), S=S, STAGE=STAGE, D=7, a_mode="direct", AR=CFG.get("k1_AR", 4),
             ACC0=32, vA=9, w_step=64 * 6144, a_step=131072,
             dma=[(2 + j, S_SRDW, S_W, 0 if j < 4 else 4096, (j % 4) * 1024) for j in range(6)],
             rd=lambda ks, nt, par: ("tr", [((D0, D1)[par] + nt % 4, (nt // 4) * 8192 + (32 * ks + 16 * u) * 128) for u in range(2)]),
             rd_bases=lambda par: [((D0, D1)[par] + c, SRC + c) for c in range(4)],
             swap=lambda nt: nt >= 8, wait_stride=CFG.get("k1_ws", 2))
    entry(p, name, 256, [(40, ARG_WQKV), (44, ARG_WS)])
    xcd_map(p, 1, 8, 4)
    dma128_col(p, 27)
    p(f"s_lshl_b32 s33, {sr(S_NB)}, 7", "v_add_u32 v27, s33, v27", "s_mov_b32 s34, 6144")
    for j in range(6):
        p(f"s_mul_i32 s30, {sr(S_WAVE)}, 6", f"s_add_u32 s30, s30, {j}", "s_lshr_b32 s31, s30, 3", "s_and_b32 s30, s30, 7",
          "s_lshl_b32 s30, s30, 3", "s_lshl_b32 s31, s31, 11",
          "v_lshrrev_b32 v28, 3, v1", "v_add_u32 v28, s30, v28",
          "v_and_b32 v29, 0x23, v28", "v_bfe_u32 v30, v28, 2, 2", "v_lshl_add_u32 v29, v30, 3, v29",
          "v_bfe_u32 v30, v28, 4, 1", "v_lshl_add_u32 v29, v30, 2, v29",
          "v_mul_lo_u32 v29, s34, v29", f"s_sub_u32 s31, s31, {(j % 4) * 1024}",
          f"v_add3_u32 v{2 + j}, v29, v27, s31")
    p("v_lshlrev_b32 v9, 4, v1")
    p("s_waitcnt lgkmcnt(0)")
    xstamp(p, 0)
    srd(p, S_SRDW, 40, 0, 6 * MB)
    srd(p, S_SRDA, 44, WS_XN, 4 * MB)
    p(f"s_mov_b32 {sr(S_W)}, 0", f"s_lshl_b32 {sr(S_A)}, {sr(S_MB)}, 13", f"s_lshl_b32 s30, {sr(S_WAVE)}, 11",
      f"s_add_u32 {sr(S_A)}, {sr(S_A)}, s30", f"s_mul_i32 {sr(S_M)}, {sr(S_WAVE)}, 6144",
      f"s_add_u32 {sr(S_MEND)}, {sr(S_M)}, {S * STAGE}", f"s_mov_b32 {sr(S_R)}, 0")
    xstamp(p, 1)
    g.emit_start(p)
    xstamp(p, 2)
    g.after_bar = lambda: xstamp(p, 3)
    rd128_bases(p, SRC, D0)
    zero_acc(p, g)
    srd(p, 12, 44, WS_Q, 12 * MB)
    stamp(p, 1)
    g.dbg = CFG.get("dbg", 0)
    g.zigzag = CFG.get("zz", 1)
    g.emit_main(p)
    stamp(p, 2)
    p("v_and_b32 v2, 15, v1", "v_lshrrev_b32 v3, 4, v1", "v_lshlrev_b32 v4, 9, v3",
      "v_lshl_add_u32 v5, v2, 4, v4",
      "v_and_b32 v6, 7, v2", "v_lshl_add_u32 v6, v6, 4, v4", "v_lshrrev_b32 v7, 3, v2", "v_lshl_add_u32 v6, v7, 8, v6",
      f"s_lshl_b32 s30, {sr(S_NB)}, 18", f"s_lshl_b32 s31, {sr(S_MB)}, 13", "s_add_u32 s30, s30, s31",
      f"s_lshl_b32 s31, {sr(S_WAVE)}, 11", "s_add_u32 s30, s30, s31",
      "s_mov_b32 s36, 0x3e8293ee", "s_mov_b32 s37, 0x3e8293ee")
    T = 8
    tq = 0
    def tmp():
        nonlocal tq
        tq = (tq + 1) % 5
        return 12 + 4 * tq
    for hh in range(2):
        for sub in range(3):
            p(f"s_add_u32 s31, s30, {hh * 131072 + sub * 4 * MB}")
            for x in range(2):
                t = tmp()
                if sub < 2:
                    r0, r1 = g.acc(sub * 4 + 2 * hh, x), g.acc(sub * 4 + 2 * hh + 1, x)
                else:
                    r0, r1 = g.acc(8 + 2 * hh + x, 0), g.acc(8 + 2 * hh + x, 1)
                if sub == 0:
                    for r in (r0, r0 + 2, r1, r1 + 2):
                        p(f"v_pk_mul_f32 {vr(r, 2)}, {vr(r, 2)}, s[36:37]")
                for d, r in enumerate((r0, r0 + 2, r1, r1 + 2)):
                    p(f"v_cvt_pk_bf16_f32 v{t + d}, v{r}, v{r + 1}")
                va, off = (6, x * 128) if sub == 1 else (5, x * 256)
                p(f"buffer_store_dwordx4 {vr(t, 4)}, v{va}, s[12:15], s31 offen offset:{off}" + stf(1))
    finish(p, name, 1)
    return name, p, (32 + 96, g.nagpr), (256, 256, S * STAGE)


def k35(which):
    name = {3: "oproj_kernel", 5: "down_kernel"}[which]
    p = Prog()
    S, STAGE = CFG.get(f"k{which}_S", 5), 16384
    SRC, D0, D1 = 10, 14, 18
    X0, X1 = 22, 23
    WBOFF = S * STAGE
    NT = 5 if which == 3 else 4
    def rd(ks, nt, par):
        if nt == 4:
            return ("b128", (X0, X1)[par], ks * 128)
        return ("tr", [((D0, D1)[par] + nt, (32 * ks + 16 * u) * 128) for u in range(2)])
    g = Gemm(name=f"k{which}", MT=2, NT=NT, KS=4, KT=8 if which == 3 else 28, U=CFG.get(f"k{which}_U", 2), S=S, STAGE=STAGE, D=7, a_mode="direct", AR=CFG.get(f"k{which}_AR", 8),
             ACC0=64, vA=9, w_step=128 * 2048, a_step=131072,
             dma=[(2 + j, S_SRDW, S_W, 0, j * 1024) for j in range(4)],
             rd=rd, rd_bases=lambda par: [((D0, D1)[par] + c, SRC + c) for c in range(4)], wait_stride=CFG.get("k35_ws", 2))
    if which == 3:
        g.extra_adv = lambda par: [f"v_add_u32 v{(X0, X1)[par]}, 512, v{(X1, X0)[par]}"]
    entry(p, name, 256, [(40, ARG_WO if which == 3 else ARG_WD), (44, ARG_WS), (46, ARG_X if which == 3 else ARG_OUT)])
    xcd_map(p, 2, 4, 8)
    dma128_col(p, 27)
    p(f"s_lshl_b32 s33, {sr(S_NB)}, 7", f"s_lshl_b32 s30, {sr(S_WAVE)}, 16", "s_add_u32 s33, s33, s30",
      "v_lshrrev_b32 v28, 3, v1", "v_lshl_add_u32 v27, v28, 11, v27", "v_add_u32 v2, s33, v27")
    for j in range(1, 4):
        p(f"v_add_u32 v{2 + j}, {j * (8 * 2048 - 1024)}, v2")
    p("v_lshlrev_b32 v9, 4, v1")
    p("s_waitcnt lgkmcnt(0)")
    xstamp(p, 0)
    srd(p, S_SRDW, 40, 0, 2 * MB if which == 3 else 3584 * 2048)
    srd(p, S_SRDA, 44, WS_O if which == 3 else WS_ACT, 4 * MB if which == 3 else ACT_SIZE)
    srd(p, 12, 44, WS_SM, SM_SIZE)
    p(f"s_mov_b32 {sr(S_W)}, 0", f"s_lshl_b32 {sr(S_A)}, {sr(S_MB)}, 13", f"s_lshl_b32 s30, {sr(S_WAVE)}, 11",
      f"s_add_u32 {sr(S_A)}, {sr(S_A)}, s30", f"s_mov_b32 s38, {sr(S_A)}", f"s_lshl_b32 {sr(S_M)}, {sr(S_WAVE)}, 12",
      f"s_add_u32 {sr(S_MEND)}, {sr(S_M)}, {S * STAGE}", f"s_mov_b32 {sr(S_R)}, 0")
    if which == 3:
        p(f"s_lshl_b32 s30, {sr(S_WAVE)}, 10", f"s_add_u32 m0, s30, {WBOFF}", f"s_add_u32 s30, s30, {SM_WB}",
          "buffer_load_dwordx4 v9, s[12:15], s30 offen lds")
    xstamp(p, 1)
    g.emit_start(p)
    xstamp(p, 2)
    g.after_bar = lambda: xstamp(p, 3)
    srd(p, 16, 46, 0, 4 * MB)
    srd(p, 48, 44, WS_HC, 4 * MB)
    p(f"s_lshl_b32 s39, {sr(S_MB)}, 7", f"s_lshl_b32 s30, {sr(S_WAVE)}, 5", "s_add_u32 s39, s39, s30",
      "v_and_b32 v24, 15, v1", "v_lshrrev_b32 v25, 4, v1", "v_lshlrev_b32 v26, 2, v24",
      "s_lshl_b32 s35, s39, 2")
    if which == 3:
        p("v_lshlrev_b32 v27, 11, v24", "v_lshl_add_u32 v27, v25, 3, v27",
          "s_lshl_b32 s36, s39, 11", f"s_lshl_b32 s30, {sr(S_NB)}, 7", "s_add_u32 s36, s36, s30", "s_add_u32 s37, s36, 32768")
        g.more_vm(p, [f"buffer_load_dwordx2 {vr(32 + 8 * mt + 2 * t, 2)}, v27, s[16:19], s{36 + mt} offen offset:{32 * t}"
                      for mt in range(2) for t in range(4)])
        g.more_vm(p, [f"buffer_load_dword v{48 + mt}, v26, s[12:15], s35 offen offset:{SM_MEANX + 64 * mt}" for mt in range(2)])
        p("v_and_b32 v28, 1, v1", "v_lshlrev_b32 v28, 6, v28", f"v_lshl_add_u32 v{X0}, v25, 4, v28", f"v_add_u32 v{X0}, {WBOFF}, v{X0}")
    else:
        p(f"s_lshl_b32 s36, {sr(S_NB)}, 18", "s_add_u32 s36, s36, s38", "s_add_u32 s37, s36, 131072",
          f"s_add_u32 s34, s35, {SM_MEANH}", "v_lshl_add_u32 v27, v25, 15, v26")
        g.more_vm(p, [f"buffer_load_dwordx4 {vr(32 + 8 * mt + 4 * kb, 4)}, v9, s[48:51], s{36 + kb} offen offset:{1024 * mt}"
                      for mt in range(2) for kb in range(2)])
        g.more_vm(p, [f"buffer_load_dword v{48 + mt}, v26, s[12:15], s34 offen offset:{64 * mt}" for mt in range(2)])
        for i in range(4):
            p(f"s_add_u32 s34, s35, {SM_SSQ + i * 8192}")
            g.more_vm(p, [f"buffer_load_dword v{50 + 4 * mt + i}, v27, s[12:15], s34 offen offset:{64 * mt}" for mt in range(2)])
    rd128_bases(p, SRC, D0)
    zero_acc(p, g)
    stamp(p, 1)
    g.dbg = CFG.get("dbg", 0)
    g.zigzag = CFG.get("zz", 1)
    g.emit_main(p)
    stamp(p, 2)
    if which == 3:
        p(f"s_lshl_b32 s36, {sr(S_NB)}, 18", "s_add_u32 s36, s36, s38", "s_add_u32 s37, s36, 131072",
          f"s_lshl_b32 s30, {sr(S_NB)}, 13", "s_add_u32 s30, s30, s35", f"s_add_u32 s30, s30, {SM_SSQ}",
          f"s_add_u32 s31, s35, {SM_MEANH}")
        for mt in range(2):
            e = g.acc(4, mt)
            m = 48 + mt
            p(f"v_add_f32 v{e}, v{e}, v{e + 1}", f"v_add_f32 v{m}, v{m}, v{e}")
            p(f"v_mov_b32 v2, 0", "v_mov_b32 v3, 0")
            for t in range(4):
                a = g.acc(t, mt)
                x = 32 + 8 * mt + 2 * t
                for d in range(2):
                    p(f"v_lshlrev_b32 v4, 16, v{x + d}", f"v_and_b32 v5, 0xffff0000, v{x + d}",
                      f"v_sub_f32 v4, v4, v{m}", f"v_sub_f32 v5, v5, v{m}",
                      f"v_pk_add_f32 {vr(a + 2 * d, 2)}, {vr(a + 2 * d, 2)}, v[4:5]",
                      f"v_pk_fma_f32 v[2:3], {vr(a + 2 * d, 2)}, {vr(a + 2 * d, 2)}, v[2:3]",
                      f"v_cvt_pk_bf16_f32 v{x + d}, v{a + 2 * d}, v{a + 2 * d + 1}")
                if t % 2 == 1:
                    p(f"buffer_store_dwordx4 {vr(x - 2, 4)}, v9, s[48:51], s{36 + t // 2} offen offset:{1024 * mt}" + stf(3))
            p("v_add_f32 v2, v2, v3")
            sum_g(p, 2, 3)
            p(f"v_mov_b32 v{6 + mt}, v2")
        p("s_mov_b64 exec, 0xffff")
        for mt in range(2):
            p(f"buffer_store_dword v{6 + mt}, v26, s[12:15], s30 offen offset:{64 * mt}")
        p(f"s_cmp_lg_u32 {sr(S_NB)}, 0", f"s_cbranch_scc1 L_{name}_fin")
        for mt in range(2):
            p(f"buffer_store_dword v{48 + mt}, v26, s[12:15], s31 offen offset:{64 * mt}")
        p(f"L_{name}_fin:")
    else:
        p("v_lshlrev_b32 v27, 11, v24", "v_and_b32 v28, 1, v25", "v_lshl_add_u32 v27, v28, 5, v27",
          "v_lshrrev_b32 v28, 1, v25", "v_lshl_add_u32 v27, v28, 4, v27",
          "s_lshl_b32 s36, s39, 11", f"s_lshl_b32 s30, {sr(S_NB)}, 7", "s_add_u32 s36, s36, s30", "s_add_u32 s37, s36, 32768")
        for mt in range(2):
            q = 50 + 4 * mt
            m = 48 + mt
            p(f"v_add_f32 v{q}, v{q}, v{q + 1}", f"v_add_f32 v{q + 2}, v{q + 2}, v{q + 3}", f"v_add_f32 v2, v{q}, v{q + 2}")
            sum_g(p, 2, 3)
            p("v_mov_b32 v3, 0x3727c5ac", "v_fmac_f32 v3, 0x3a800000, v2", "v_rcp_f32 v2, v3", "s_nop 0", "v_mov_b32 v3, v2")
            for t in range(4):
                a = g.acc(t, mt)
                x = 32 + 8 * mt + 2 * t
                for d in range(2):
                    p(f"v_lshlrev_b32 v4, 16, v{x + d}", f"v_and_b32 v5, 0xffff0000, v{x + d}",
                      f"v_add_f32 v4, v4, v{m}", f"v_add_f32 v5, v5, v{m}",
                      f"v_pk_fma_f32 v[4:5], {vr(a + 2 * d, 2)}, v[2:3], v[4:5]",
                      f"v_cvt_pk_bf16_f32 v{x + d}, v4, v5")
                if t % 2 == 1:
                    p(f"v_permlane16_swap_b32 v{x - 2}, v{x}", f"v_permlane16_swap_b32 v{x - 1}, v{x + 1}",
                      f"buffer_store_dwordx4 {vr(x - 2, 4)}, v27, s[16:19], s{36 + mt} offen offset:{64 * (t // 2)}" + stf(5))
    finish(p, name, which)
    return name, p, (64 + NT * 2 * 4, g.nagpr), (256, 256, S * STAGE + (4096 if which == 3 else 0))


def k4():
    name = "glu_kernel"
    p = Prog()
    S, STAGE = CFG.get("k4_S", 5), 28672
    SRC, D0, D1 = 10, 11, 12
    g = Gemm(name="k4", MT=4, NT=14, KS=2, KT=16, U=CFG.get("k4_U", 2), S=S, STAGE=STAGE, D=CFG.get("k4_D", 3), a_mode="direct",
             AR=CFG.get("k4_AR", 4), ACC0=32, vA=9, w_step=64 * 7168, a_step=131072,
             dma=[(2 + j, S_SRDW, S_W, 0 if j < 4 else 4096, (j % 4) * 1024) for j in range(7)],
             rd=lambda ks, nt, par: ("tr", [((D0, D1)[par], (nt // 7) * 14336 + (32 * ks + 16 * u) * 224 + (nt % 7) * 32) for u in range(2)]),
             rd_bases=lambda par: [((D0, D1)[par], SRC)])
    entry(p, name, 256, [(40, ARG_WG), (42, ARG_WU), (44, ARG_WS)])
    xcd_map(p, 1, 4, 8)
    assert all((e * 4682) >> 16 == e // 14 for e in range(896))
    p(f"s_and_b32 s30, {sr(S_WAVE)}, 1", "s_mul_i32 s30, s30, 448", f"s_and_b32 s33, {sr(S_NB)}, 1", "s_lshl_b32 s33, s33, 1",
      f"s_mul_i32 s35, {sr(S_NB)}, 224", "s_movk_i32 s34, 7168", "v_add_u32 v27, s30, v1")
    for j in range(7):
        p(f"v_add_u32 v28, {64 * j}, v27" if j else "v_mov_b32 v28, v27",
          "v_mul_u32_u24 v29, 4682, v28", "v_lshrrev_b32 v29, 16, v29",
          "v_mul_u32_u24 v30, 14, v29", "v_sub_u32 v30, v28, v30", "v_add_u32 v30, s33, v30",
          "v_subrev_u32 v31, 14, v30", "v_min_u32 v30, v30, v31",
          "v_mul_lo_u32 v29, s34, v29", "v_lshl_add_u32 v29, v30, 4, v29",
          f"s_sub_u32 s31, s35, {(j % 4) * 1024}", f"v_add_u32 v{2 + j}, s31, v29")
    p("v_lshlrev_b32 v9, 4, v1")
    p("s_waitcnt lgkmcnt(0)")
    xstamp(p, 0)
    p(f"s_cmp_lt_u32 {sr(S_WAVE)}, 2", "s_cselect_b32 s4, s40, s42", "s_cselect_b32 s5, s41, s43",
      f"s_mov_b32 s6, {1024 * 7168}", "s_mov_b32 s7, 0x20000")
    srd(p, S_SRDA, 44, WS_HC, 4 * MB)
    p(f"s_mov_b32 {sr(S_W)}, 0", f"s_lshl_b32 {sr(S_A)}, {sr(S_MB)}, 14", f"s_lshl_b32 s30, {sr(S_WAVE)}, 12",
      f"s_add_u32 {sr(S_A)}, {sr(S_A)}, s30", f"s_mov_b32 s38, {sr(S_A)}", f"s_mul_i32 {sr(S_M)}, {sr(S_WAVE)}, 7168",
      f"s_add_u32 {sr(S_MEND)}, {sr(S_M)}, {S * STAGE}", f"s_mov_b32 {sr(S_R)}, 0")
    xstamp(p, 1)
    g.emit_start(p)
    xstamp(p, 2)
    g.after_bar = lambda: xstamp(p, 3)
    p("v_lshrrev_b32 v28, 2, v1", "v_mul_u32_u24 v28, 224, v28", "v_and_b32 v29, 3, v1", f"v_lshl_add_u32 v{SRC}, v29, 3, v28",
      f"v_mov_b32 v{D0}, v{SRC}")
    zero_acc(p, g)
    srd(p, 12, 44, WS_ACT, ACT_SIZE)
    stamp(p, 1)
    g.dbg = CFG.get("dbg", 0)
    g.zigzag = CFG.get("zz", 1)
    g.emit_main(p)
    stamp(p, 2)
    p(f"s_lshr_b32 s30, {sr(S_NB)}, 1", "s_mul_i32 s30, s30, 7", f"s_and_b32 s31, {sr(S_NB)}, 1",
      "s_add_u32 s32, s30, 3", "s_lshl_b32 s32, s32, 17", "s_add_u32 s32, s32, s38", "s_lshl_b32 s33, s31, 3", "s_add_u32 s32, s32, s33",
      "s_lshl_b32 s31, s31, 2", "s_add_u32 s30, s30, s31", "s_lshl_b32 s30, s30, 17", "s_add_u32 s30, s30, s38")
    tq = 0
    for pr in range(4):
        for mt in range(4):
            t = 12 + 4 * tq
            tq = (tq + 1) % 5
            tiles = (2 * pr, 2 * pr + 1) if pr < 3 else (6,)
            for i, nt in enumerate(tiles):
                a, b = g.acc(nt, mt), g.acc(nt + 7, mt)
                p(f"v_pk_mul_f32 {vr(a, 2)}, {vr(a, 2)}, {vr(b, 2)}", f"v_pk_mul_f32 {vr(a + 2, 2)}, {vr(a + 2, 2)}, {vr(b + 2, 2)}")
            for i, nt in enumerate(tiles):
                a = g.acc(nt, mt)
                p(f"v_cvt_pk_bf16_f32 v{t + 2 * i}, v{a}, v{a + 1}", f"v_cvt_pk_bf16_f32 v{t + 2 * i + 1}, v{a + 2}, v{a + 3}")
            if pr < 3:
                p(f"buffer_store_dwordx4 {vr(t, 4)}, v9, s[12:15], s30 offen offset:{1024 * mt}" + stf(4))
            else:
                p(f"buffer_store_dwordx2 {vr(t, 2)}, v9, s[12:15], s32 offen offset:{1024 * mt}" + stf(4))
        if pr < 2:
            p("s_add_u32 s30, s30, 131072")
    finish(p, name, 4)
    return name, p, (256, g.nagpr), (256, 256, S * STAGE)


from attn import k2


def build(kernels=None):
    KID[0] = 0
    ks = [k0(), k1(), k2(CFG, entry, finish, stamp, srd), k35(3), k4(), k35(5)]
    for i in range(CFG.get("pad", 0)):
        q = Prog()
        q(f"nop{i}_kernel:", "s_endpgm")
        ks.insert(CFG.get("padpos", 3), (f"nop{i}_kernel", q, (8, 0), (256, 256, 0)))
    if kernels is not None:
        ks = [k for i, k in enumerate(ks) if i in kernels]
    head = open(f"cdna_kernels/{NAME}.s.ref").read().split("; Override launch")[0]
    out = head
    out += "; Generated by a script (software-pipelined MFMA kernels); one launch per phase.\n"
    for name, p, regs, (grid, blk, lds) in ks:
        out += f"; @launch kernel={name} grid=({grid},1,1) block=({blk},1,1) lds={lds}\n"
    out += '.amdgcn_target "amdgcn-amd-amdhsa--gfx950"\n'
    out += ".text\n.p2align 8\nL_text_begin:\n"
    for name, p, regs, _ in ks:
        out += kernel_header(name) + p.text()
    out += "L_text_end:\n"
    for name, p, regs, _ in ks:
        out += kernel_desc(name, regs[0], regs[1])
    return out


if __name__ == "__main__":
    dst = f"cdna_kernels/{NAME}.s"
    for a in sys.argv[1:]:
        if "=" in a:
            k, v = a.split("=")
            if k == "out":
                dst = v
            else:
                CFG[k] = int(v)
    open(dst, "w").write(build())
    print("wrote", dst)
```
